```python
import torch

def _softmax(x, axis=-1):
    return torch.softmax(x, dim=axis)
def _gelu(x):
    return torch.nn.functional.gelu(x, approximate="tanh")
def _silu(x):
    return torch.nn.functional.silu(x)
def _sigmoid(x):
    return torch.sigmoid(x)
def _layernorm(x, axis=-1, eps=1e-5):
    m = x.mean(dim=axis, keepdim=True)
    v = x.var(dim=axis, keepdim=True, unbiased=False)
    return (x - m) / torch.sqrt(v + eps)
def _scatter_add(tgt, idx, src, axis=0):
    return tgt.clone().index_add_(axis, idx, src)
def _segment_sum(src, seg, n):
    out = torch.zeros((n,) + src.shape[1:], dtype=src.dtype)
    return out.index_add_(0, seg, src)
def _pad(x, pw):
    flat = tuple(v for pair in reversed(pw) for v in pair)
    return torch.nn.functional.pad(x, flat)

kernel_name = 'standalone__gqa_block_cached__decode'

def setup_inputs():

    _w = (lambda a: (lambda t: t.to(torch.bfloat16) if t.is_floating_point() else t)(torch.as_tensor(a)))
    B, Sq, D = 2, 1, 576
    Hq, Hkv, Sk, Dh = 32, 16, 32768, 128
    assert Hq % Hkv == 0, (Hq, Hkv)
    return {
        "x": _w((lambda *s: torch.randn(*s, dtype=torch.bfloat16) * 0.8)(B, Sq, D)),
        "k_cache": _w((lambda *s: torch.randn(*s, dtype=torch.bfloat16) * 0.8)(B, Hkv, Sk, Dh)),
        "v_cache": _w((lambda *s: torch.randn(*s, dtype=torch.bfloat16) * 0.05)(B, Hkv, Sk, Dh)),
        "wq": _w((lambda *s: torch.randn(*s, dtype=torch.bfloat16) * 0.8)(D, Hq * Dh) * (D ** -0.5)),
        "wo": _w((lambda *s: torch.randn(*s, dtype=torch.bfloat16) * 0.05)(Hq * Dh, D) * ((Hq * Dh) ** -0.5)),
    }

def reference(x, k_cache, v_cache, wq, wo):
    B, Sq, D = x.shape
    Hq, Dh = 32, 128
    Hkv = k_cache.shape[1]
    rep = Hq // Hkv
    q = (lambda x, *d: x.permute(*d))((x @ wq).reshape(B, Sq, Hq, Dh), 0, 2, 1, 3)
    k = (lambda x, n, axis: torch.repeat_interleave(x, n, dim=axis))(k_cache, rep, axis=1)
    v = (lambda x, n, axis: torch.repeat_interleave(x, n, dim=axis))(v_cache, rep, axis=1)
    scores = torch.einsum("bhqd,bhkd->bhqk", q, k) * (Dh ** -0.5)
    p = _softmax(scores, axis=-1)
    o = torch.einsum("bhqk,bhkd->bhqd", p, v)
    return (lambda x, *d: x.permute(*d))(o, 0, 2, 1, 3).reshape(B, Sq, Hq * Dh) @ wo
```

```python
import re

_VREG = re.compile(r'\bv\[(\d+):(\d+)\]|\bv(\d+)\b')
_SREG = re.compile(r'\bs\[(\d+):(\d+)\]|\bs(\d+)\b|\b(vcc)\b|\b(exec)\b|\b(m0)\b')

TRANS = ('v_exp_f32', 'v_log_f32', 'v_rcp_f32', 'v_rsq_f32', 'v_sqrt_f32', 'v_sin_f32', 'v_cos_f32', 'v_rcp_iflag_f32')


def vregs(tok):
    out = []
    for m in _VREG.finditer(tok):
        if m.group(1) is not None:
            out += ['v%d' % i for i in range(int(m.group(1)), int(m.group(2)) + 1)]
        else:
            out.append('v' + m.group(3))
    return out


def sregs(tok):
    out = []
    for m in _SREG.finditer(tok):
        if m.group(1) is not None:
            out += ['s%d' % i for i in range(int(m.group(1)), int(m.group(2)) + 1)]
        elif m.group(3) is not None:
            out.append('s' + m.group(3))
        elif m.group(4):
            out.append('vcc')
        elif m.group(5):
            out.append('exec')
        elif m.group(6):
            out.append('m0')
    return out


def split_ops(s):
    ops, depth, cur = [], 0, ''
    for ch in s:
        if ch in '[(':
            depth += 1
        elif ch in '])':
            depth -= 1
        if ch == ',' and depth == 0:
            ops.append(cur.strip())
            cur = ''
        else:
            cur += ch
    if cur.strip():
        ops.append(cur.strip())
    return ops


class Asm:
    def __init__(self):
        self.lines = []
        self.pos = 0
        self.w = {}
        self.cread = {}
        self.sdata = {}
        self.maxv = -1
        self.maxs = -1

    def raw(self, text):
        self.lines.append(text)

    def comment(self, text):
        self.lines.append('    ; ' + text)

    def nop(self, n):
        while n > 0:
            k = min(n, 16)
            self.lines.append('    s_nop %d' % (k - 1))
            self.pos += k
            n -= k

    def flush(self):
        need = 0
        for r, (kind, op, p, info) in self.w.items():
            d = {'mfma': 8 if info == 4 else 12, 'dot': 3, 'valu': 2, 'trans': 2, 'valu_s': 5}.get(kind, 0)
            need = max(need, d - (self.pos - p - 1))
        for r, p in self.cread.items():
            need = max(need, 7 - (self.pos - p - 1))
        for r, p in self.sdata.items():
            need = max(need, 2 - (self.pos - p - 1))
        if need > 0:
            self.nop(need)

    def label(self, name):
        self.flush()
        self.lines.append(name + ':')

    def __call__(self, text):
        text = text.strip()
        body = text.split(';')[0].strip()
        sp = body.split(None, 1)
        op = sp[0]
        rest = sp[1] if len(sp) > 1 else ''
        ops = split_ops(rest)
        for r in vregs(rest):
            self.maxv = max(self.maxv, int(r[1:]))
        for r in sregs(rest):
            if r[0] == 's':
                self.maxs = max(self.maxs, int(r[1:]))
        is_valu = op.startswith('v_')
        is_mfma = op.startswith('v_mfma')
        is_dot = op.startswith('v_dot')
        is_trans = op.split('_e')[0] in TRANS or op in TRANS
        is_vmem = op.startswith('buffer_') or op.startswith('global_')
        is_ds = op.startswith('ds_')
        is_dpp = ('_dpp' in op) or ('quad_perm' in rest) or ('row_' in rest)
        is_perml = op.startswith('v_permlane')
        is_rl = op.startswith('v_readlane') or op.startswith('v_readfirstlane')
        is_branch = op.startswith('s_branch') or op.startswith('s_cbranch')
        vdst, vsrc, sdst, ssrc = [], [], [], []
        srcC = []
        if is_valu:
            first = ops[0].split()[0] if ops else ''
            if is_rl or op.startswith('v_cmp'):
                sdst = sregs(ops[0])
                for o in ops[1:]:
                    vsrc += vregs(o); ssrc += sregs(o)
            elif is_perml:
                vdst = vregs(ops[0]) + vregs(ops[1])
                vsrc = list(vdst)
            else:
                vdst = vregs(ops[0])
                k = 1
                if op.startswith('v_add_co') or op.startswith('v_sub_co') or op.startswith('v_addc_co'):
                    sdst = sregs(ops[1]); k = 2
                for o in ops[k:]:
                    vsrc += vregs(o); ssrc += sregs(o)
                if op.startswith('v_fmac') or op.startswith('v_dot2c') or op.startswith('v_mac'):
                    vsrc += vdst
                if is_dpp:
                    vsrc += vdst
                if op.startswith('v_cndmask') and len(ops) == 3:
                    ssrc.append('vcc')
                if is_mfma:
                    srcC = vregs(ops[3])
                if is_dot and len(ops) == 4:
                    srcC = vregs(ops[3])
                if op.startswith('v_dot2c'):
                    srcC = list(vdst)
        elif is_vmem:
            store = ('store' in op) or ('atomic' in op)
            lds = rest.rstrip().endswith('lds') or ' lds' in rest
            for i, o in enumerate(ops):
                ssrc += sregs(o)
            if op in ('buffer_wbl2', 'buffer_inv'):
                pass
            elif op.startswith('buffer_'):
                if lds:
                    vsrc += vregs(ops[0])
                elif store:
                    vsrc += vregs(ops[0]) + vregs(ops[1])
                    if 'atomic' in op and 'sc0' in rest:
                        vdst = vregs(ops[0])
                else:
                    vdst = vregs(ops[0]); vsrc += vregs(ops[1])
            else:
                if 'atomic' in op and 'sc0' in rest:
                    vdst = vregs(ops[0]); vsrc += vregs(ops[1]) + vregs(ops[2])
                elif store:
                    vsrc += vregs(ops[0]) + vregs(ops[1])
                else:
                    vdst = vregs(ops[0]); vsrc += vregs(ops[1])
        elif is_ds:
            if op.startswith('ds_read') or op.startswith('ds_bpermute') or op.startswith('ds_swizzle') or '_rtn' in op:
                vdst = vregs(ops[0])
                for o in ops[1:]:
                    vsrc += vregs(o)
            else:
                for o in ops:
                    vsrc += vregs(o)
        else:
            for o in ops:
                ssrc += sregs(o)
        need = 0

        def req(p, d):
            nonlocal need
            need = max(need, d - (self.pos - p - 1))

        for r in vsrc + vdst:
            if r in self.w:
                kind, wop, p, info = self.w[r]
                reading = r in vsrc
                if kind == 'mfma':
                    passes = info
                    tab = {4: (8, 6, 8), 8: (12, 10, 12)}[passes]
                    if is_mfma:
                        if r in srcC and reading and r not in [x for o in ops[1:3] for x in vregs(o)]:
                            if self.w[r][1] == op and vregs(ops[3]) == self.mf_last.get(r):
                                pass
                            else:
                                req(p, tab[1])
                        else:
                            req(p, tab[2])
                    else:
                        req(p, tab[0])
                elif kind in ('valu', 'trans', 'dot'):
                    if reading:
                        if is_dpp or is_perml:
                            req(p, 2)
                        if is_rl:
                            req(p, 1)
                        if is_mfma:
                            req(p, 2)
                        if kind == 'trans' and not is_trans:
                            req(p, 1)
                    if kind == 'dot':
                        if is_dot and wop == op and r in srcC and r not in [x for o in ops[1:3] for x in vregs(o)]:
                            pass
                        elif is_dot and wop == op and not reading:
                            pass
                        else:
                            req(p, 3)
        if is_valu or is_vmem or is_ds:
            for r in vdst:
                if r in self.cread and is_valu and not is_mfma:
                    req(self.cread[r], 7)
                if r in self.sdata:
                    req(self.sdata[r], 2)
        for r in ssrc:
            if r in self.w:
                kind, wop, p, info = self.w[r]
                if kind == 'valu_s':
                    if is_vmem:
                        req(p, 5)
                    elif is_valu:
                        req(p, 4 if is_rl else 2)
                    else:
                        req(p, 2)
                elif kind == 'salu' and r == 'm0' and (is_vmem or is_ds):
                    req(p, 1)
        if is_branch:
            self.flush()
        if need > 0:
            self.nop(need)
        self.lines.append('    ' + text)
        p = self.pos
        if op == 's_nop':
            self.pos += int(ops[0]) + 1
        else:
            self.pos += 1
        if not hasattr(self, 'mf_last'):
            self.mf_last = {}
        if is_valu:
            kind = 'mfma' if is_mfma else 'dot' if is_dot else 'trans' if is_trans else 'valu'
            info = None
            if is_mfma:
                info = 4 if '16x16x32' in op else 8
                for r in srcC:
                    self.cread[r] = p
                for r in vdst:
                    self.mf_last[r] = vdst
            for r in vdst:
                self.w[r] = (kind, op, p, info)
            for r in sdst:
                self.w[r] = ('valu_s', op, p, None)
        else:
            for r in vdst:
                self.w[r] = ('mem', op, p, None)
            if is_vmem and ('x4' in op or 'x3' in op) and ('store' in op):
                for r in vregs(ops[0] if op.startswith('buffer_') else ops[1]):
                    self.sdata[r] = p
            if not (is_vmem or is_ds) and ops and op.startswith('s_') and not op.startswith('s_cmp') and not is_branch and op not in ('s_waitcnt', 's_nop', 's_barrier', 's_endpgm', 's_sleep', 's_setprio'):
                for r in sregs(ops[0]):
                    self.w[r] = ('salu', op, p, None)

    def text(self):
        return '\n'.join(self.lines) + '\n'
```

```python
import sys, struct, argparse
sys.path.insert(0, 'tools')
from asmlib import Asm

NAME = 'standalone__gqa_block_cached__decode'
CSCALE = (128 ** -0.5) * 1.4426950408889634
def f32bits(x): return struct.unpack('<I', struct.pack('<f', x))[0]

QP_OFF = 0
AP_OFF = 1 << 20
OP_OFF = 2 << 20
WS_BYTES = 1 << 30

HEADER = """; Kernarg layout for this problem (64 bytes, ptrs only, base s[0:1]):
"""

def srd(a, d, lo, nbytes):
    a(f's_mov_b32 s{d}, s{lo}')
    a(f's_and_b32 s{d+1}, s{lo+1}, 0xffff')
    a(f's_mov_b32 s{d+2}, 0x{nbytes:x}')
    a(f's_mov_b32 s{d+3}, 0x00020000')

def masks(a, vl, vm, vt0, vt1):
    a(f'v_and_b32 v{vt0}, 1, v{vl}')
    a(f'v_lshlrev_b32 v{vt0}, 4, v{vt0}')
    a(f'v_mov_b32 v{vt1}, 0xffff')
    a(f'v_lshlrev_b32 v{vt0}, v{vt0}, v{vt1}')
    a(f'v_bfe_u32 v{vt1}, v{vl}, 1, 2')
    for j in range(4):
        a(f'v_cmp_eq_u32 vcc, {j}, v{vt1}')
        a(f'v_cndmask_b32 v{vm+j}, 0, v{vt0}, vcc')

def kernel_begin(a, name):
    a.raw(f'.globl {name}\n.p2align 8\n.type {name},@function\n{name}:')

def kd(name, nv, ns=96):
    nv8 = (nv + 7) // 8 * 8
    return f""".amdhsa_kernel {name}
  .amdhsa_next_free_vgpr {nv8}
  .amdhsa_next_free_sgpr {ns}
  .amdhsa_accum_offset {nv8}
  .amdhsa_group_segment_fixed_size 0
  .amdhsa_kernarg_size 64
  .amdhsa_user_sgpr_count 2
  .amdhsa_user_sgpr_kernarg_segment_ptr 1
  .amdhsa_system_sgpr_workgroup_id_x 1
.end_amdhsa_kernel
"""

def gen_qproj():
    a = Asm()
    kernel_begin(a, 'qproj_kernel')
    a('s_cmp_ge_u32 s2, 256')
    a('s_cbranch_scc1 L_q_done')
    a('s_load_dwordx2 s[4:5], s[0:1], 0')
    a('s_load_dwordx2 s[6:7], s[0:1], 24')
    a('s_load_dwordx2 s[8:9], s[0:1], 56')
    a('v_and_b32 v1, 63, v0')
    a('v_lshrrev_b32 v2, 6, v0')
    a('v_lshrrev_b32 v3, 4, v1')
    a('v_and_b32 v4, 15, v1')
    a('v_lshlrev_b32 v5, 13, v3')
    a('v_lshl_add_u32 v5, v4, 4, v5')
    a('v_lshl_add_u32 v5, v2, 8, v5')
    a('v_bfe_u32 v7, v1, 3, 1')
    a('v_mul_u32_u24 v6, 1152, v7')
    a('v_lshl_add_u32 v6, v3, 1, v6')
    a('v_lshlrev_b32 v8, 10, v7')
    a('v_lshl_add_u32 v8, v2, 9, v8')
    a('v_lshl_add_u32 v8, v3, 7, v8')
    a('v_and_b32 v9, 7, v1')
    a('v_lshl_add_u32 v8, v9, 2, v8')
    masks(a, 1, 12, 10, 11)
    a('s_lshr_b32 s20, s2, 4')
    a('s_and_b32 s21, s2, 15')
    a('s_mul_i32 s22, s21, 36')
    a('s_lshl_b32 s23, s22, 13')
    a('s_lshl_b32 s24, s20, 9')
    a('s_add_u32 s23, s23, s24')
    a('s_lshl_b32 s25, s22, 1')
    a('s_lshl_b32 s26, s2, 11')
    a('s_waitcnt lgkmcnt(0)')
    srd(a, 28, 4, 2304)
    srd(a, 32, 6, 576 * 8192)
    srd(a, 36, 8, WS_BYTES)
    for i in range(9):
        a(f'buffer_load_dwordx4 v[{32+4*i}:{35+4*i}], v5, s[32:35], s23 offen')
        a('s_add_u32 s23, s23, 0x8000')
    for i in range(9):
        a(f'buffer_load_ushort v{20+i}, v6, s[28:31], s25 offen offset:{8*i}')
    a('s_waitcnt vmcnt(0)')
    for i in range(9):
        a(f'v_lshl_or_b32 v{20+i}, v{20+i}, 16, v{20+i}')
    for i in range(9):
        bb = 72 + 4 * (i & 1)
        for j in range(4):
            a(f'v_and_b32 v{bb+j}, v{20+i}, v{12+j}')
        c = '0' if i == 0 else 'v[16:19]'
        a(f'v_mfma_f32_16x16x32_bf16 v[16:19], v[{32+4*i}:{35+4*i}], v[{bb}:{bb+3}], {c}')
    for r in range(4):
        a(f'buffer_store_dword v{16+r}, v8, s[36:39], s26 offen offset:{32*r}')
    a.label('L_q_done')
    a('s_endpgm')
    return a, a.maxv + 1


def gen_attn(T=8, NBUF=2, NW=8, interleave=0, cache=''):
    a = Asm()
    kernel_begin(a, 'attn_kernel')
    keys_per_wave = 4096 // NW
    NT = keys_per_wave // (4 * T)
    assert NT % NBUF == 0 and NT >= 2 * NBUF
    tile_bytes = T * 1024
    BUF = 64
    def kreg(buf, i): return BUF + buf * 8 * T + 4 * i
    def vreg(buf, i): return BUF + buf * 8 * T + 4 * T + 4 * i
    VL, VOFF = 1, 2
    nvo = (T + 3) // 4
    QA, QB, MK, ACC = 8, 12, 16, 20
    VM, VLS, VMT, VT0, VT1, VAL, VNMC = 24, 25, 26, 27, 28, 29, 30
    S0 = 32
    SN = 32 + 16
    assert T <= 16
    BB = 4
    BB2 = 56
    a('s_cmp_ge_u32 s2, 256')
    a('s_cbranch_scc1 L_a_done')
    a('s_load_dwordx4 s[4:7], s[0:1], 8')
    a('s_load_dwordx2 s[8:9], s[0:1], 56')
    a(f'v_and_b32 v{VL}, 63, v0')
    a(f'v_lshrrev_b32 v{VT0}, 6, v0')
    a(f'v_lshlrev_b32 v{VOFF}, 4, v{VL}')
    for j in range(1, nvo):
        a(f'v_add_u32 v{VOFF+j}, {4096*j}, v{VOFF}')
    a(f'v_readfirstlane_b32 s20, v{VT0}')
    a('s_lshr_b32 s21, s2, 4')
    a('s_bfe_u32 s22, s2, 0x10003')
    a('s_and_b32 s23, s2, 7')
    a('s_lshl_b32 s24, s22, 4')
    a('s_add_u32 s24, s24, s21')
    a('s_lshl_b32 s24, s24, 23')
    a('s_lshl_b32 s25, s23, 20')
    a('s_add_u32 s24, s24, s25')
    if interleave:
        a(f's_mul_i32 s25, s20, {tile_bytes}')
        tstep = tile_bytes * NW
    else:
        a(f's_mul_i32 s25, s20, {keys_per_wave*256}')
        tstep = tile_bytes
    a('s_add_u32 s24, s24, s25')
    a('s_mov_b32 s26, s24')
    a('s_lshl_b32 s27, s21, 15')
    a('s_lshl_b32 s28, s22, 10')
    a('s_add_u32 s27, s27, s28')
    a(f's_mov_b32 s30, 0x{f32bits(CSCALE):x}')
    a('s_waitcnt lgkmcnt(0)')
    srd(a, 32, 4, 1 << 28)
    srd(a, 36, 6, 1 << 28)
    srd(a, 40, 8, WS_BYTES)

    def issueK(buf):
        for i in range(T):
            a(f'buffer_load_dwordx4 v[{kreg(buf,i)}:{kreg(buf,i)+3}], v{VOFF+i//4}, s[32:35], s24 offen offset:{(i%4)*1024} {cache}')
        a(f's_add_u32 s24, s24, {tstep}')
    def issueV(buf):
        for i in range(T):
            a(f'buffer_load_dwordx4 v[{vreg(buf,i)}:{vreg(buf,i)+3}], v{VOFF+i//4}, s[36:39], s26 offen offset:{(i%4)*1024} {cache}')
        a(f's_add_u32 s26, s26, {tstep}')

    npre = NBUF - (64 + 8 * T - 1) // (8 * T)
    assert npre >= 0
    QT = BUF + npre * 8 * T
    a('s_cmp_lg_u32 s20, 0')
    a('s_cbranch_scc1 L_a_noq')
    for i in range(16):
        a(f'buffer_load_dwordx4 v[{QT+4*i}:{QT+4*i+3}], v{VOFF}, s[40:43], s27 offen offset:{QP_OFF}')
        a('s_add_u32 s27, s27, 2048')
    for b in range(npre):
        issueK(b); issueV(b)
    a(f's_waitcnt vmcnt({npre*2*T})')
    for i in range(1, 16):
        for r in range(4):
            a(f'v_add_f32 v{QT+r}, v{QT+r}, v{QT+4*i+r}')
    a(f'v_cvt_pk_bf16_f32 v{VT0}, v{QT}, v{QT+1}')
    a(f'v_cvt_pk_bf16_f32 v{VT1}, v{QT+2}, v{QT+3}')
    a(f'v_lshlrev_b32 v{VAL}, 3, v{VL}')
    a(f'ds_write_b64 v{VAL}, v[{VT0}:{VT1}]') if VT0 % 2 == 0 else (a(f'ds_write_b32 v{VAL}, v{VT0}'), a(f'ds_write_b32 v{VAL}, v{VT1} offset:4'))
    for b in range(npre, NBUF):
        issueK(b); issueV(b)
    a('s_branch L_a_qjoin')
    a.label('L_a_noq')
    for b in range(NBUF):
        issueK(b); issueV(b)
    a.label('L_a_qjoin')
    masks(a, VL, MK, VT0, VT1)
    a(f'v_and_b32 v{VT0}, 15, v{VL}')
    a(f'v_lshlrev_b32 v{VT0}, 4, v{VT0}')
    a(f'v_bfe_u32 v{VT1}, v{VL}, 3, 1')
    a(f'v_lshl_add_u32 v{VT0}, v{VT1}, 8, v{VT0}')
    a(f'v_xor_b32 v{VT1}, 0x100, v{VT0}')
    a(f'v_mov_b32 v{VM}, 0xff800000')
    a(f'v_mov_b32 v{VLS}, 0')
    for r in range(4):
        a(f'v_mov_b32 v{ACC+r}, 0')
    a('s_waitcnt lgkmcnt(0)')
    a('s_barrier')
    a(f'ds_read_b128 v[{QA}:{QA+3}], v{VT0}')
    a(f'ds_read_b128 v[{QB}:{QB+3}], v{VT1}')
    a('s_waitcnt lgkmcnt(0)')

    def tile(buf, w1, w2, prefetch):
        a(f's_waitcnt vmcnt({w1})')
        for i in range(T):
            k = kreg(buf, i)
            for j in range(4):
                c = '0' if j == 0 else f'v{S0+i}'
                a(f'v_dot2_f32_bf16 v{S0+i}, v{k+j}, v{QA+j}, {c}')
                c = '0' if j == 0 else f'v{SN+i}'
                a(f'v_dot2_f32_bf16 v{SN+i}, v{k+j}, v{QB+j}, {c}')
        if prefetch:
            issueK(buf)
        for i in range(T):
            a(f'v_add_f32_dpp v{S0+i}, v{SN+i}, v{S0+i} row_ror:8 row_mask:0xf bank_mask:0xf')
        for i in range(T):
            a(f'v_add_f32_dpp v{S0+i}, v{S0+i}, v{S0+i} row_half_mirror row_mask:0xf bank_mask:0xf')
        for i in range(T):
            a(f'v_add_f32_dpp v{S0+i}, v{S0+i}, v{S0+i} quad_perm:[1,0,3,2] row_mask:0xf bank_mask:0xf')
        for i in range(T):
            a(f'v_add_f32_dpp v{S0+i}, v{S0+i}, v{S0+i} quad_perm:[2,3,0,1] row_mask:0xf bank_mask:0xf')
        a(f'v_max3_f32 v{VMT}, v{S0}, v{S0+1}, v{VM}')
        for i in range(2, T, 2):
            a(f'v_max3_f32 v{VMT}, v{S0+i}, v{S0+i+1}, v{VMT}')
        a(f'v_mov_b32 v{VT0}, v{VMT}')
        a(f'v_permlane16_swap_b32 v{VMT}, v{VT0}')
        a(f'v_max_f32 v{VMT}, v{VMT}, v{VT0}')
        a(f'v_mov_b32 v{VT0}, v{VMT}')
        a(f'v_permlane32_swap_b32 v{VMT}, v{VT0}')
        a(f'v_max_f32 v{VMT}, v{VMT}, v{VT0}')
        a(f'v_sub_f32 v{VT0}, v{VM}, v{VMT}')
        a(f'v_mul_f32 v{VT0}, s30, v{VT0}')
        a(f'v_exp_f32 v{VAL}, v{VT0}')
        a(f'v_mul_f32 v{VNMC}, s30, v{VMT}')
        a(f'v_mov_b32 v{VM}, v{VMT}')
        for i in range(T):
            a(f'v_fma_f32 v{S0+i}, v{S0+i}, s30, -v{VNMC}')
        for i in range(T):
            a(f'v_exp_f32 v{S0+i}, v{S0+i}')
        for r in range(4):
            a(f'v_mul_f32 v{ACC+r}, v{ACC+r}, v{VAL}')
        a(f'v_mul_f32 v{VLS}, v{VLS}, v{VAL}')
        for i in range(T):
            a(f'v_add_f32 v{VLS}, v{VLS}, v{S0+i}')
            a(f'v_cvt_pk_bf16_f32 v{SN+i}, v{S0+i}, v{S0+i}')
        a(f's_waitcnt vmcnt({w2})')
        for i in range(T):
            bb = BB if i % 2 == 0 else BB2
            for j in range(4):
                a(f'v_and_b32 v{bb+j}, v{SN+i}, v{MK+j}')
            v = vreg(buf, i)
            a(f'v_mfma_f32_16x16x32_bf16 v[{ACC}:{ACC+3}], v[{v}:{v+3}], v[{bb}:{bb+3}], v[{ACC}:{ACC+3}]')
        if prefetch:
            issueV(buf)

    niter = (NT - NBUF) // NBUF
    a(f's_mov_b32 s29, {niter}')
    a.label('L_a_loop')
    for b in range(NBUF):
        w = (2 * NBUF - 1) * T
        tile(b, w, w, True)
    a('s_sub_u32 s29, s29, 1')
    a('s_cmp_lg_u32 s29, 0')
    a('s_cbranch_scc1 L_a_loop')
    for b in range(NBUF):
        rem = NBUF - b
        tile(b, (2 * rem - 1) * T, (2 * rem - 2) * T, False)
    a(f'v_mov_b32 v{VT0}, v{VLS}')
    a(f'v_permlane16_swap_b32 v{VLS}, v{VT0}')
    a(f'v_add_f32 v{VLS}, v{VLS}, v{VT0}')
    a(f'v_mov_b32 v{VT0}, v{VLS}')
    a(f'v_permlane32_swap_b32 v{VLS}, v{VT0}')
    a(f'v_add_f32 v{VLS}, v{VLS}, v{VT0}')
    a('s_mul_i32 s25, s20, 1536')
    a(f'v_add_u32 v{VT0}, s25, v{VOFF}')
    a(f'v_lshlrev_b32 v{VT1}, 2, v{VL}')
    a(f'v_add_u32 v{VAL}, s25, v{VT1}')
    a(f'ds_write_b128 v{VT0}, v[{ACC}:{ACC+3}] offset:1024')
    a(f'ds_write_b32 v{VAL}, v{VM} offset:2048')
    a(f'ds_write_b32 v{VAL}, v{VLS} offset:2304')
    a('s_waitcnt lgkmcnt(0)')
    a('s_barrier')
    a('s_cmp_lg_u32 s20, 0')
    a('s_cbranch_scc1 L_a_done')
    RB = BUF
    for w in range(NW):
        a(f'ds_read_b128 v[{RB+4*w}:{RB+4*w+3}], v{VOFF} offset:{1024+1536*w}')
        a(f'ds_read_b32 v{RB+4*NW+w}, v{VT1} offset:{2048+1536*w}')
        a(f'ds_read_b32 v{RB+5*NW+w}, v{VT1} offset:{2304+1536*w}')
    a('s_waitcnt lgkmcnt(0)')
    combine(a, NW, RB, RB + 4 * NW, RB + 5 * NW, VM, VLS, ACC, VT0, 's30')
    a('s_lshl_b32 s25, s2, 11')
    a(f's_add_u32 s25, s25, {AP_OFF}')
    a(f'buffer_store_dwordx4 v[{ACC}:{ACC+3}], v{VOFF}, s[40:43], s25 offen')
    a(f'buffer_store_dword v{VM}, v{VT1}, s[40:43], s25 offen offset:1024')
    a(f'buffer_store_dword v{VLS}, v{VT1}, s[40:43], s25 offen offset:1280')
    a.label('L_a_done')
    a('s_endpgm')
    return a, a.maxv + 1, 1024 + 1536 * NW


def combine(a, n, RO, RM, RL, VM, VLS, ACC, VT, sc):
    a(f'v_max_f32 v{VM}, v{RM}, v{RM+1}')
    for i in range(2, n, 2):
        a(f'v_max3_f32 v{VM}, v{RM+i}, v{RM+i+1}, v{VM}')
    for i in range(n):
        a(f'v_sub_f32 v{RM+i}, v{RM+i}, v{VM}')
    for i in range(n):
        a(f'v_mul_f32 v{RM+i}, {sc}, v{RM+i}')
    for i in range(n):
        a(f'v_exp_f32 v{RM+i}, v{RM+i}')
    a(f'v_mul_f32 v{VLS}, v{RM}, v{RL}')
    for r in range(4):
        a(f'v_mul_f32 v{ACC+r}, v{RM}, v{RO+r}')
    for i in range(1, n):
        a(f'v_fmac_f32 v{VLS}, v{RM+i}, v{RL+i}')
        for r in range(4):
            a(f'v_fmac_f32 v{ACC+r}, v{RM+i}, v{RO+4*i+r}')


def gen_comb():
    a = Asm()
    kernel_begin(a, 'comb_kernel')
    VL, VOFF, VT0, VT1, VT2, VW = 1, 2, 3, 4, 5, 6
    MK, ACC, VM, VLS = 8, 12, 16, 17
    BB, BB2 = 20, 24
    WO = 32
    PP = 28
    RB = 64
    a('s_cmp_ge_u32 s2, 256')
    a('s_cbranch_scc1 L_c_done')
    a('s_load_dwordx2 s[4:5], s[0:1], 32')
    a('s_load_dwordx2 s[8:9], s[0:1], 56')
    a(f'v_and_b32 v{VL}, 63, v0')
    a(f'v_lshrrev_b32 v{VW}, 6, v0')
    a(f'v_lshlrev_b32 v{VOFF}, 4, v{VL}')
    a(f'v_readfirstlane_b32 s20, v{VW}')
    a(f'v_lshrrev_b32 v{VT0}, 4, v{VL}')
    a(f'v_mul_u32_u24 v{VT0}, 1152, v{VT0}')
    a(f'v_and_b32 v{VT1}, 15, v{VL}')
    a(f'v_min_u32 v{VT1}, 8, v{VT1}')
    a(f'v_lshl_add_u32 v{VT0}, v{VT1}, 4, v{VT0}')
    a('s_lshr_b32 s21, s2, 4')
    a('s_bfe_u32 s22, s2, 0x10003')
    a('s_and_b32 s23, s2, 7')
    a('s_lshl_b32 s24, s21, 3')
    a('s_add_u32 s24, s24, s20')
    a(f's_mul_i32 s24, s24, {32*1152}')
    a('s_mul_i32 s25, s23, 144')
    a('s_add_u32 s24, s24, s25')
    a('s_and_b32 s26, s2, 0xf8')
    a('s_lshl_b32 s26, s26, 11')
    a(f's_add_u32 s26, s26, {AP_OFF}')
    a(f's_mov_b32 s30, 0x{f32bits(CSCALE):x}')
    a('s_waitcnt lgkmcnt(0)')
    srd(a, 32, 4, 4096 * 1152)
    srd(a, 40, 8, WS_BYTES)
    a(f'v_lshlrev_b32 v{VT1}, 2, v{VL}')
    a('s_cmp_lg_u32 s20, 0')
    a('s_cbranch_scc1 L_c_nop')
    for i in range(8):
        a(f'buffer_load_dwordx4 v[{RB+4*i}:{RB+4*i+3}], v{VOFF}, s[40:43], s26 offen')
        a(f'buffer_load_dword v{RB+32+i}, v{VT1}, s[40:43], s26 offen offset:1024')
        a(f'buffer_load_dword v{RB+40+i}, v{VT1}, s[40:43], s26 offen offset:1280')
        a('s_add_u32 s26, s26, 2048')
    a.label('L_c_nop')
    for i in range(8):
        a(f'buffer_load_dwordx4 v[{WO+4*i}:{WO+4*i+3}], v{VT0}, s[32:35], s24 offen')
        a('s_add_u32 s24, s24, 4608')
    masks(a, VL, MK, VT2, PP)
    a('s_cmp_lg_u32 s20, 0')
    a('s_cbranch_scc1 L_c_join')
    a('s_waitcnt vmcnt(8)')
    combine(a, 8, RB, RB + 32, RB + 40, VM, VLS, ACC, VT2, 's30')
    a(f'v_rcp_f32 v{VLS}, v{VLS}')
    for r in range(4):
        a(f'v_mul_f32 v{ACC+r}, v{ACC+r}, v{VLS}')
    for r in range(4):
        a(f'v_cvt_pk_bf16_f32 v{ACC+r}, v{ACC+r}, v{ACC+r}')
    a(f'v_bfe_u32 v{VT2}, v{VL}, 3, 1')
    a(f'v_lshlrev_b32 v{VT2}, 9, v{VT2}')
    a(f'v_lshrrev_b32 v{PP}, 4, v{VL}')
    a(f'v_lshl_add_u32 v{VT2}, v{PP}, 7, v{VT2}')
    a(f'v_and_b32 v{PP}, 7, v{VL}')
    a(f'v_lshl_add_u32 v{VT2}, v{PP}, 2, v{VT2}')
    for r in range(4):
        a(f'ds_write_b32 v{VT2}, v{ACC+r} offset:{32*r}')
    a.label('L_c_join')
    a('s_waitcnt lgkmcnt(0)')
    a('s_barrier')
    a(f'v_lshrrev_b32 v{VT2}, 4, v{VL}')
    a(f'v_lshlrev_b32 v{VT2}, 2, v{VT2}')
    a(f'v_lshl_add_u32 v{VT2}, v{VW}, 7, v{VT2}')
    for i in range(8):
        a(f'ds_read_b32 v{RB+i}, v{VT2} offset:{16*i}')
    a('s_waitcnt vmcnt(0) lgkmcnt(0)')
    for i in range(8):
        bb = BB if i % 2 == 0 else BB2
        for j in range(4):
            a(f'v_and_b32 v{bb+j}, v{RB+i}, v{MK+j}')
        c = '0' if i == 0 else f'v[{ACC}:{ACC+3}]'
        a(f'v_mfma_f32_16x16x32_bf16 v[{ACC}:{ACC+3}], v[{WO+4*i}:{WO+4*i+3}], v[{bb}:{bb+3}], {c}')
    a(f'v_lshl_add_u32 v{VT2}, v{VW}, 10, v{VOFF}')
    a(f'ds_write_b128 v{VT2}, v[{ACC}:{ACC+3}] offset:1024')
    a('s_waitcnt lgkmcnt(0)')
    a('s_barrier')
    a('s_cmp_lg_u32 s20, 0')
    a('s_cbranch_scc1 L_c_done')
    for w in range(8):
        a(f'ds_read_b128 v[{RB+4*w}:{RB+4*w+3}], v{VOFF} offset:{1024+1024*w}')
    a('s_waitcnt lgkmcnt(0)')
    for w in range(1, 8):
        for r in range(4):
            a(f'v_add_f32 v{RB+r}, v{RB+r}, v{RB+4*w+r}')
    a(f'v_lshrrev_b32 v{VT0}, 4, v{VL}')
    a(f'v_and_b32 v{VT1}, 7, v{VL}')
    a(f'v_lshlrev_b32 v{VT1}, 2, v{VT1}')
    a(f'v_lshl_add_u32 v{VT1}, v{VT0}, 7, v{VT1}')
    a(f'v_mov_b32 v{PP}, 0x40000000')
    a(f'v_and_b32 v{VT2}, 8, v{VL}')
    a(f'v_cmp_eq_u32 vcc, 0, v{VT2}')
    a(f'v_cndmask_b32 v{VT1}, v{PP}, v{VT1}, vcc')
    a(f'v_cmp_gt_u32 vcc, 3, v{VT0}')
    a(f'v_cndmask_b32 v{VT2}, v{PP}, v{VT1}, vcc')
    a(f'v_cmp_gt_u32 vcc, 2, v{VT0}')
    a(f'v_cndmask_b32 v{VT1}, v{PP}, v{VT1}, vcc')
    a('s_lshl_b32 s24, s22, 4')
    a('s_add_u32 s24, s24, s21')
    a('s_mul_i32 s24, s24, 2304')
    a('s_mul_i32 s25, s23, 288')
    a('s_add_u32 s24, s24, s25')
    a(f's_add_u32 s24, s24, {OP_OFF}')
    a(f'buffer_store_dword v{RB}, v{VT2}, s[40:43], s24 offen')
    for r in range(1, 4):
        a(f'buffer_store_dword v{RB+r}, v{VT1}, s[40:43], s24 offen offset:{32*r}')
    a.label('L_c_done')
    a('s_endpgm')
    return a, a.maxv + 1, 1024 + 8192


def gen_final():
    a = Asm()
    kernel_begin(a, 'final_kernel')
    a('s_cmp_ge_u32 s2, 9')
    a('s_cbranch_scc1 L_f_done')
    a('s_load_dwordx2 s[4:5], s[0:1], 40')
    a('s_load_dwordx2 s[8:9], s[0:1], 56')
    a('s_lshl_b32 s20, s2, 6')
    a('v_add_u32 v1, s20, v0')
    a('v_lshlrev_b32 v2, 3, v1')
    a('v_add_u32 v3, 34560, v2')
    a('v_cmp_le_u32 vcc, 288, v1')
    a('v_cndmask_b32 v2, v2, v3, vcc')
    a('v_lshlrev_b32 v4, 2, v1')
    a(f's_mov_b32 s24, {OP_OFF}')
    a('s_waitcnt lgkmcnt(0)')
    srd(a, 32, 4, 2304)
    srd(a, 40, 8, WS_BYTES)
    for i in range(16):
        a(f'buffer_load_dwordx2 v[{8+2*i}:{9+2*i}], v2, s[40:43], s24 offen')
        a('s_add_u32 s24, s24, 2304')
    a('s_waitcnt vmcnt(0)')
    for i in range(1, 16):
        a(f'v_add_f32 v8, v8, v{8+2*i}')
        a(f'v_add_f32 v9, v9, v{9+2*i}')
    a('v_cvt_pk_bf16_f32 v8, v8, v9')
    a('buffer_store_dword v8, v4, s[32:35], 0 offen')
    a.label('L_f_done')
    a('s_endpgm')
    return a, a.maxv + 1


def build(T=8, NBUF=2, NW=8, interleave=0, cache=''):
    q, qv = gen_qproj()
    at, av, alds = gen_attn(T, NBUF, NW, interleave, cache)
    c, cv, clds = gen_comb()
    f, fv = gen_final()
    s = HEADER
    s += '; @launch kernel=qproj_kernel grid=(256,1,1) block=(128,1,1) lds=0\n'
    s += f'; @launch kernel=attn_kernel grid=(256,1,1) block=({64*NW},1,1) lds={alds}\n'
    s += f'; @launch kernel=comb_kernel grid=(256,1,1) block=(512,1,1) lds={clds}\n'
    s += '; @launch kernel=final_kernel grid=(9,1,1) block=(64,1,1) lds=0\n'
    s += '.amdgcn_target "amdgcn-amd-amdhsa--gfx950"\n.text\n'
    s += q.text() + at.text() + c.text() + f.text()
    s += '.section .rodata,"a"\n.p2align 6\n'
    s += kd('qproj_kernel', qv) + '.p2align 6\n' + kd('attn_kernel', av) + '.p2align 6\n' + kd('comb_kernel', cv) + '.p2align 6\n' + kd('final_kernel', fv)
    return s

if __name__ == '__main__':
    ap = argparse.ArgumentParser()
    ap.add_argument('--T', type=int, default=8)
    ap.add_argument('--NBUF', type=int, default=2)
    ap.add_argument('--NW', type=int, default=8)
    ap.add_argument('--il', type=int, default=0)
    ap.add_argument('--cache', default='')
    ap.add_argument('-o', default=f'cdna_kernels/{NAME}.s')
    args = ap.parse_args()
    open(args.o, 'w').write(build(args.T, args.NBUF, args.NW, args.il, args.cache))
```

```python
import sys, struct, argparse
sys.path.insert(0, 'tools')
from asmlib import Asm

NAME = 'standalone__gqa_block_cached__decode'
CSCALE = (128 ** -0.5) * 1.4426950408889634
def f32bits(x): return struct.unpack('<I', struct.pack('<f', x))[0]

QP_OFF = 0
AP_OFF = 1 << 20
OP_OFF = 2 << 20
CNT_OFF = 3 << 20
WS_BYTES = 1 << 30
OOB = 0x40000000

HEADER = """; Kernarg layout for this problem (64 bytes, ptrs only, base s[0:1]):
;   offset  16: d_in[2] v_cache  shape=(2, 16, 32768, 128) dtype=bfloat16
"""

def srd(a, d, lo, nbytes):
    a(f's_mov_b32 s{d}, s{lo}')
    a(f's_and_b32 s{d+1}, s{lo+1}, 0xffff')
    a(f's_mov_b32 s{d+2}, 0x{nbytes:x}')
    a(f's_mov_b32 s{d+3}, 0x00020000')

def masks(a, vl, vm, vt0, vt1):
    a(f'v_and_b32 v{vt0}, 1, v{vl}')
    a(f'v_lshlrev_b32 v{vt0}, 4, v{vt0}')
    a(f'v_mov_b32 v{vt1}, 0xffff')
    a(f'v_lshlrev_b32 v{vt0}, v{vt0}, v{vt1}')
    a(f'v_bfe_u32 v{vt1}, v{vl}, 1, 2')
    for j in range(4):
        a(f'v_cmp_eq_u32 vcc, {j}, v{vt1}')
        a(f'v_cndmask_b32 v{vm+j}, 0, v{vt0}, vcc')

def combine(a, n, RO, RM, RL, VM, VLS, ACC, sc, mstride=1):
    M = lambda i: RM + i * mstride
    L = lambda i: RL + i * mstride
    a(f'v_max_f32 v{VM}, v{M(0)}, v{M(1)}')
    for i in range(2, n, 2):
        a(f'v_max3_f32 v{VM}, v{M(i)}, v{M(i+1)}, v{VM}')
    for i in range(n):
        a(f'v_sub_f32 v{M(i)}, v{M(i)}, v{VM}')
    for i in range(n):
        a(f'v_mul_f32 v{M(i)}, {sc}, v{M(i)}')
    for i in range(n):
        a(f'v_exp_f32 v{M(i)}, v{M(i)}')
    a(f'v_mul_f32 v{VLS}, v{M(0)}, v{L(0)}')
    for r in range(4):
        a(f'v_mul_f32 v{ACC+r}, v{M(0)}, v{RO+r}')
    for i in range(1, n):
        a(f'v_fmac_f32 v{VLS}, v{M(i)}, v{L(i)}')
        for r in range(4):
            a(f'v_fmac_f32 v{ACC+r}, v{M(i)}, v{RO+4*i+r}')

def anymarker(a, regs, vt, label_retry, scnt, label_giveup):
    a(f'v_max_u32 v{vt}, v{regs[0]}, v{regs[1]}')
    for i in range(2, len(regs) - 1, 2):
        a(f'v_max3_u32 v{vt}, v{regs[i]}, v{regs[i+1]}, v{vt}')
    if len(regs) % 2:
        a(f'v_max_u32 v{vt}, v{regs[-1]}, v{vt}')
    a(f'v_cmp_eq_u32 vcc, -1, v{vt}')
    a(f's_sub_u32 {scnt}, {scnt}, 1')
    a(f's_cbranch_scc1 {label_giveup}')
    a('s_cmp_lg_u64 vcc, 0')
    a(f's_cbranch_scc1 {label_retry}')

def gen(T=4, NBUF=2, NW=4, nreg=1, ch=1, cache='nt', rot=0, stamp=0, b0=0, prio=1, pf=0, NS=0, noq=0, static=0, slp=0, nocomp=0, notail=0, NL=0, wnt='nt', burst=0, fs=0):
    a = Asm()
    kn = NAME + '_kernel'
    a.raw(f'.globl {kn}\n.p2align 8\n.type {kn},@function\n{kn}:')
    NTP = 32768 // (4 * T)
    tile_bytes = T * 1024
    tsh = tile_bytes.bit_length() - 1
    WPP = 8 * NW
    BUF = 64
    base_static = 2 * NBUF + NS + NL
    first_static = 1 if (NS and fs >= base_static + NBUF) else 0
    n1 = max(0, (fs - base_static - first_static * NBUF) // NBUF)
    tot_static = base_static + (first_static + n1) * NBUF
    def kreg(buf, i): return BUF + buf * 8 * T + 4 * i
    def vreg(buf, i): return BUF + buf * 8 * T + 4 * T + 4 * i
    VL, VOFF = 1, 2
    nvo = (T + 3) // 4
    assert nvo <= 2
    QA, QB, MK, ACC = 8, 12, 16, 20
    VM, VLS, VMT, VT0, VT1, VAL, VNMC = 24, 25, 26, 27, 28, 29, 30
    VAO = 31
    S0, SN = 32, 40
    BB, BB2 = 4, 48
    VA = 52
    VDUM = 60
    VT2, VT3 = 62, 63
    assert T <= 8 and NBUF <= 8
    SOFF = 80
    L_Q = 0
    L_O = 512
    L_P = 2048
    L_S = (L_P + NW * 1536 + 1023) // 1024 * 1024
    lds_bytes = L_S + NW * NL * 2 * tile_bytes
    assert lds_bytes <= 160 * 1024
    assert NL == 0 or (T == 4 and NS >= 1)
    a('s_cmp_ge_u32 s2, 256')
    a('s_cbranch_scc1 L_done')
    if stamp:
        a('s_memrealtime s[70:71]')
    a('s_load_dwordx16 s[4:19], s[0:1], 0')
    a(f'v_and_b32 v{VL}, 63, v0')
    a(f'v_lshrrev_b32 v{VT0}, 6, v0')
    a(f'v_lshlrev_b32 v{VOFF}, 4, v{VL}')
    for j in range(1, nvo):
        a(f'v_add_u32 v{VOFF+j}, {4096*j}, v{VOFF}')
    a(f'v_readfirstlane_b32 s20, v{VT0}')
    a(f'v_mov_b32 v{VAO}, 0x{OOB:x}')
    a(f'v_cmp_eq_u32 vcc, 0, v{VL}')
    a(f'v_cndmask_b32 v{VAO}, v{VAO}, 0, vcc')
    a('s_lshr_b32 s21, s2, 4')
    a('s_bfe_u32 s22, s2, 0x10003')
    a('s_and_b32 s23, s2, 7')
    a('s_lshl_b32 s24, s22, 4')
    a('s_add_u32 s24, s24, s21')
    a('s_lshl_b32 s44, s24, 8')
    a(f's_add_u32 s44, s44, {CNT_OFF}')
    a(f's_mul_i32 s45, s24, {rot}')
    a('s_lshl_b32 s24, s24, 23')
    a(f's_mov_b32 s30, 0x{f32bits(CSCALE):x}')
    masks(a, VL, MK, VT0, VT1)
    a('s_cmp_eq_u32 s20, 0')
    a('s_cbranch_scc1 L_helper')

    lr, lc = nreg.bit_length() - 1, ch.bit_length() - 1
    ln = NTP.bit_length() - 1
    def tick2off(st, sd):
        a(f's_add_u32 s29, {st}, s45')
        a(f's_and_b32 s29, s29, {NTP-1}')
        if nreg > 1:
            a(f's_bfe_u32 s31, s29, 0x{(lr << 16) | lc:x}')
            a(f's_lshl_b32 s31, s31, {ln-lr}')
            a(f's_lshr_b32 s28, s29, {lr+lc}')
            a(f's_lshl_b32 s28, s28, {lc}')
            a(f's_or_b32 s31, s31, s28')
            a(f's_and_b32 s29, s29, {ch-1}')
            a(f's_or_b32 s29, s29, s31')
        a(f's_lshl_b32 s29, s29, {tsh}')
        a('s_add_u32 s29, s29, s24')
        a(f's_cmp_lt_u32 {st}, {NTP}')
        a(f's_cselect_b32 {sd}, s29, 0x10000000')
    a(f's_mul_i32 s25, s23, {NW}')
    a('s_add_u32 s25, s25, s20')
    a('s_sub_u32 s25, s25, 1')
    assert NBUF + NS + NL <= 12
    for b in range(NBUF + NS + NL):
        a(f's_add_u32 s26, s25, {b*WPP}')
        tick2off('s26', f's{SOFF+b}')
    for b in range(NBUF):
        a(f's_add_u32 s26, s25, {(NBUF+NS+NL+b)*WPP}')
        a(f'v_mov_b32 v{VA+b}, s26')
    if NL:
        a('s_sub_u32 s27, s20, 1')
        a(f's_mul_i32 s47, s27, {NL*2*tile_bytes}')
        a(f's_add_u32 s47, s47, {L_S}')
        a(f'v_add_u32 v{VT2}, s47, v{VOFF}')
    a(f'v_and_b32 v{VT0}, 15, v{VL}')
    a(f'v_lshlrev_b32 v{VT0}, 4, v{VT0}')
    a(f'v_bfe_u32 v{VT1}, v{VL}, 3, 1')
    a(f'v_lshl_add_u32 v{VT0}, v{VT1}, 8, v{VT0}')
    a(f'v_xor_b32 v{VT1}, 0x100, v{VT0}')
    a(f'v_mov_b32 v{VM}, 0xff800000')
    a(f'v_mov_b32 v{VLS}, 0')
    for r in range(4):
        a(f'v_mov_b32 v{ACC+r}, 0')
    a(f'v_mov_b32 v{VDUM+1}, 0x{OOB:x}')
    a('s_waitcnt lgkmcnt(0)')
    srd(a, 32, 6, 1 << 28)
    srd(a, 36, 8, 1 << 28)
    srd(a, 40, 18, WS_BYTES)
    srd(a, 56, 12, 4096 * 1152)
    if b0:
        a('s_barrier')
    Q = []
    def issueK(buf):
        for i in range(T):
            a(f'buffer_load_dwordx4 v[{kreg(buf,i)}:{kreg(buf,i)+3}], v{VOFF+i//4}, s[32:35], s{SOFF+buf} offen offset:{(i%4)*1024} {cache}')
            Q.append(('K', buf))
    def issueV(buf):
        for i in range(T):
            a(f'buffer_load_dwordx4 v[{vreg(buf,i)}:{vreg(buf,i)+3}], v{VOFF+i//4}, s[36:39], s{SOFF+buf} offen offset:{(i%4)*1024} {cache}')
            Q.append(('V', buf))
    def waitfor(tag):
        idx = max(i for i, t in enumerate(Q) if t == tag)
        n = len(Q) - 1 - idx
        a(f's_waitcnt vmcnt({min(n, 63)})')
        del Q[:idx + 1]
        return n
    for b in range(NBUF + NS):
        if pf and b >= pf:
            waitfor(('V', b - pf))
        if b < NBUF:
            a(f'buffer_load_dword v{VDUM}, v{VDUM+1}, s[40:43], 0 offen')
            Q.append(('A', b))
        issueK(b); issueV(b)
        assert len(Q) <= 63
    for k in range(NL):
        b = NBUF + NS + k
        if pf and b >= pf:
            waitfor(('V', b - pf))
        for tag, sr, off in (('K', 32, 0), ('V', 36, tile_bytes)):
            a(f's_add_u32 m0, s47, {k*2*tile_bytes + off}')
            a('s_nop 0')
            for i in range(T):
                a(f'buffer_load_dwordx4 v{VOFF}, s[{sr}:{sr+3}], s{SOFF+b} offen offset:{i*1024} {cache} lds')
                Q.append((tag, b))
        assert len(Q) <= 63
    if not noq:
        a('s_barrier')
    a(f'ds_read_b128 v[{QA}:{QA+3}], v{VT0} offset:{L_Q}')
    a(f'ds_read_b128 v[{QB}:{QB+3}], v{VT1} offset:{L_Q}')
    if stamp:
        a('s_memrealtime s[72:73]')
    a('s_waitcnt lgkmcnt(0)')
    w1 = T + (NBUF - 1) * (2 * T + 1)
    w2 = (NBUF - 1) * (2 * T + 1) + T + 1
    if burst:
        w2 = (NBUF - 1) * (2 * T + 1)
    assert w2 <= 63
    a_real = a
    def tile(buf, mode):
        refill = mode != 'stash'
        a0 = a_real
        def a(t):
            op = t.split()[0]
            if nocomp & 1 and op.startswith('v_dot2'): return
            if nocomp & 2 and op.startswith('v_') and not op.startswith('v_dot2') and not op.startswith('v_mfma') and 'readfirstlane' not in op and f'v{VA+buf},' not in t: return
            if nocomp & 4 and op.startswith('v_mfma'): return
            a0(t)
        st = static or mode == 'sloop' or (mode == 'first' and first_static)
        if mode == 'sloop':
            a(f's_waitcnt vmcnt({w1})')
        elif mode == 'loop':
            a(f's_cmp_ge_u32 s{SOFF+buf}, 0x10000000')
            a('s_cbranch_scc1 L_exit')
            a(f's_waitcnt vmcnt({w1})')
        elif ('K', buf) in Q:
            waitfor(('K', buf))
        if refill:
            a(f'v_readfirstlane_b32 s26, v{VA+buf}')
        for i in range(T):
            k = kreg(buf, i)
            for j in range(4):
                c = '0' if j == 0 else f'v{S0+i}'
                a(f'v_dot2_f32_bf16 v{S0+i}, v{k+j}, v{QA+j}, {c}')
                c = '0' if j == 0 else f'v{SN+i}'
                a(f'v_dot2_f32_bf16 v{SN+i}, v{k+j}, v{QB+j}, {c}')
        vpend = ('V', buf) in Q
        if vpend:
            for i, t in enumerate(Q):
                if t == ('V', buf): Q[i] = ('Vold', buf)
        def refillK():
            if st:
                a(f'v_add_u32 v{VA+buf}, {NBUF*WPP}, v{VA+buf}')
                tick2off('s26', f's{SOFF+buf}')
                a(f'buffer_load_dword v{VDUM}, v{VDUM+1}, s[40:43], 0 offen')
            else:
                a(f'v_mov_b32 v{VA+buf}, 1')
                tick2off('s26', f's{SOFF+buf}')
                a(f'buffer_atomic_add v{VA+buf}, v{VAO}, s[40:43], s44 offen sc0 sc1')
            Q.append(('A', buf))
            issueK(buf)
        if refill and not burst:
            refillK()
        for i in range(T):
            a(f'v_add_f32_dpp v{S0+i}, v{SN+i}, v{S0+i} row_ror:8 row_mask:0xf bank_mask:0xf')
        for i in range(T):
            a(f'v_add_f32_dpp v{S0+i}, v{S0+i}, v{S0+i} row_half_mirror row_mask:0xf bank_mask:0xf')
        for i in range(T):
            a(f'v_add_f32_dpp v{S0+i}, v{S0+i}, v{S0+i} quad_perm:[1,0,3,2] row_mask:0xf bank_mask:0xf')
        for i in range(T):
            a(f'v_add_f32_dpp v{S0+i}, v{S0+i}, v{S0+i} quad_perm:[2,3,0,1] row_mask:0xf bank_mask:0xf')
        a(f'v_max3_f32 v{VMT}, v{S0}, v{S0+1}, v{VM}')
        for i in range(2, T, 2):
            a(f'v_max3_f32 v{VMT}, v{S0+i}, v{S0+i+1}, v{VMT}')
        a(f'v_mov_b32 v{VT0}, v{VMT}')
        a(f'v_permlane16_swap_b32 v{VMT}, v{VT0}')
        a(f'v_max_f32 v{VMT}, v{VMT}, v{VT0}')
        a(f'v_mov_b32 v{VT0}, v{VMT}')
        a(f'v_permlane32_swap_b32 v{VMT}, v{VT0}')
        a(f'v_max_f32 v{VMT}, v{VMT}, v{VT0}')
        a(f'v_sub_f32 v{VT0}, v{VM}, v{VMT}')
        a(f'v_mul_f32 v{VT0}, s30, v{VT0}')
        a(f'v_exp_f32 v{VAL}, v{VT0}')
        a(f'v_mul_f32 v{VNMC}, s30, v{VMT}')
        a(f'v_mov_b32 v{VM}, v{VMT}')
        for i in range(T):
            a(f'v_fma_f32 v{S0+i}, v{S0+i}, s30, -v{VNMC}')
        for i in range(T):
            a(f'v_exp_f32 v{S0+i}, v{S0+i}')
        for r in range(4):
            a(f'v_mul_f32 v{ACC+r}, v{ACC+r}, v{VAL}')
        a(f'v_mul_f32 v{VLS}, v{VLS}, v{VAL}')
        for i in range(T):
            a(f'v_add_f32 v{VLS}, v{VLS}, v{S0+i}')
            a(f'v_cvt_pk_bf16_f32 v{SN+i}, v{S0+i}, v{S0+i}')
        if mode in ('loop', 'sloop'):
            a(f's_waitcnt vmcnt({w2})')
        elif vpend:
            waitfor(('Vold', buf))
        for i in range(T):
            bb = BB if i % 2 == 0 else BB2
            for j in range(4):
                a(f'v_and_b32 v{bb+j}, v{SN+i}, v{MK+j}')
            v = vreg(buf, i)
            a(f'v_mfma_f32_16x16x32_bf16 v[{ACC}:{ACC+3}], v[{v}:{v+3}], v[{bb}:{bb+3}], v[{ACC}:{ACC+3}]')
        if refill:
            if burst:
                refillK()
            issueV(buf)
    if NS:
        for b in range(NBUF):
            tile(b, 'first')
        for b in range(NBUF, NBUF + NS):
            tile(b, 'stash')
        def readback(k):
            b = NBUF + NS + k
            dst = NBUF + (k % NS)
            if ('V', b) in Q:
                waitfor(('V', b))
            for i in range(T):
                a(f'ds_read_b128 v[{kreg(dst,i)}:{kreg(dst,i)+3}], v{VT2} offset:{k*2*tile_bytes + i*1024}')
            for i in range(T):
                a(f'ds_read_b128 v[{vreg(dst,i)}:{vreg(dst,i)+3}], v{VT2} offset:{k*2*tile_bytes + tile_bytes + i*1024}')
        nrb = min(NS, 2)
        for k in range(min(nrb - 1, NL)):
            readback(k)
        for k in range(NL):
            if nrb > 1 and k + 1 < NL:
                readback(k + 1)
                a(f's_waitcnt lgkmcnt({2*T})')
            else:
                if nrb == 1:
                    readback(k)
                a('s_waitcnt lgkmcnt(0)')
            tile(NBUF + (k % NS), 'stash')
        exp = []
        for b in range(NBUF):
            exp += [('A', b)] + [('K', b)] * T + [('V', b)] * T
        assert Q == exp, Q
    RPW = 256 // NW
    NWO = RPW // 8
    WO = BUF + NBUF * 8 * T
    a(f'v_lshrrev_b32 v{VT2}, 4, v{VL}')
    a(f'v_bfe_u32 v{VT3}, v{VL}, 3, 1')
    a(f'v_lshl_add_u32 v{VT0}, v{VT2}, 1, v{VT3}')
    a(f'v_mul_u32_u24 v{VT0}, 1152, v{VT0}')
    a(f'v_and_b32 v{VT1}, 7, v{VL}')
    a(f'v_lshl_add_u32 v{VT0}, v{VT1}, 4, v{VT0}')
    a('s_sub_u32 s27, s20, 1')
    a('s_and_b32 s25, s2, 15')
    a(f's_mul_i32 s28, s21, {NW}')
    a('s_add_u32 s28, s28, s27')
    a(f's_mul_i32 s28, s28, {RPW*1152}')
    a('s_lshl_b32 s29, s25, 7')
    a('s_add_u32 s28, s28, s29')
    a('s_cmp_lt_u32 s25, 9')
    a('s_cselect_b32 s28, s28, 0x10000000')
    for i in range(NWO):
        a(f'buffer_load_dwordx4 v[{WO+4*i}:{WO+4*i+3}], v{VT0}, s[56:59], s28 offen {wnt}')
        a('s_add_u32 s28, s28, 9216')
    if n1:
        a(f's_mov_b32 s46, {n1}')
        a.label('L_sloop')
        for b in range(NBUF):
            tile(b, 'sloop')
        a('s_sub_u32 s46, s46, 1')
        a('s_cmp_lg_u32 s46, 0')
        a('s_cbranch_scc1 L_sloop')
    a.label('L_loop')
    for b in range(NBUF):
        tile(b, 'loop')
    a('s_branch L_loop')
    a.label('L_exit')
    if notail:
        a('s_waitcnt vmcnt(0)')
        a('s_memrealtime s[74:75]')
        a('s_waitcnt lgkmcnt(0)')
        a('s_sub_u32 s27, s20, 1')
        a('s_lshl_b32 s76, s2, 4')
        a('s_add_u32 s76, s76, s27')
        a('s_lshl_b32 s76, s76, 5')
        a('s_add_u32 s76, s76, 0x800000')
        a('s_getreg_b32 s77, hwreg(HW_REG_XCC_ID)')
        a(f'v_mov_b32 v{S0}, s70')
        a(f'v_mov_b32 v{S0+1}, s72')
        a(f'v_mov_b32 v{S0+2}, s74')
        a(f'v_mov_b32 v{S0+3}, s77')
        a(f'buffer_store_dwordx4 v[{S0}:{S0+3}], v{VAO}, s[40:43], s76 offen')
        a('s_lshl_b32 s76, s2, 4')
        a('s_add_u32 s76, s76, 14')
        a('s_lshl_b32 s76, s76, 5')
        a('s_add_u32 s76, s76, 0x800000')
        a(f'buffer_store_dwordx4 v[{S0}:{S0+3}], v{VAO}, s[40:43], s76 offen')
        a(f'v_mov_b32 v{S0+1}, s74')
        a(f'buffer_store_dwordx4 v[{S0}:{S0+3}], v{VAO}, s[40:43], s76 offen offset:16')
        a('s_endpgm')
    if noq:
        a('s_barrier')
    a('s_waitcnt vmcnt(0)')
    if stamp:
        a('s_memrealtime s[74:75]')
    a(f'v_mov_b32 v{VT0}, v{VLS}')
    a(f'v_permlane16_swap_b32 v{VLS}, v{VT0}')
    a(f'v_add_f32 v{VLS}, v{VLS}, v{VT0}')
    a(f'v_mov_b32 v{VT0}, v{VLS}')
    a(f'v_permlane32_swap_b32 v{VLS}, v{VT0}')
    a(f'v_add_f32 v{VLS}, v{VLS}, v{VT0}')
    a('s_mul_i32 s29, s27, 1536')
    a(f'v_add_u32 v{VT0}, s29, v{VOFF}')
    a(f'v_lshlrev_b32 v{VT1}, 3, v{VL}')
    a(f'v_add_u32 v{VAL}, s29, v{VT1}')
    a(f'ds_write_b128 v{VT0}, v[{ACC}:{ACC+3}] offset:{L_P}')
    a(f'ds_write_b64 v{VAL}, v[{VM}:{VLS}] offset:{L_P+1024}')
    def sstamp():
        if stamp:
            a('s_waitcnt lgkmcnt(0)')
            a('s_lshl_b32 s76, s2, 4')
            a('s_add_u32 s76, s76, s27')
            a('s_lshl_b32 s76, s76, 5')
            a('s_add_u32 s76, s76, 0x800000')
            a('s_getreg_b32 s77, hwreg(HW_REG_XCC_ID)')
            a(f'v_mov_b32 v{S0}, s70')
            a(f'v_mov_b32 v{S0+1}, s72')
            a(f'v_mov_b32 v{S0+2}, s74')
            a(f'v_mov_b32 v{S0+3}, s77')
            a(f'buffer_store_dwordx4 v[{S0}:{S0+3}], v{VAO}, s[40:43], s76 offen')
    a(f'v_lshlrev_b32 v{VT3}, 9, v{VT3}')
    a(f'v_lshl_add_u32 v{VT2}, v{VT2}, 2, v{VT3}')
    a(f's_mul_i32 s29, s27, {RPW*2}')
    a(f'v_add_u32 v{VT2}, s29, v{VT2}')
    a('s_lshl_b32 s29, s27, 10')
    a(f'v_add_u32 v{VT0}, s29, v{VOFF}')
    a('s_mov_b32 s94, 0x01000100')
    a('s_mov_b32 s95, 0x03020302')
    a(f'v_cmp_gt_u32 s[92:93], 32, v{VL}')
    a('s_waitcnt lgkmcnt(0)')
    a('s_barrier')
    a('s_cmp_lt_u32 s25, 9')
    a('s_cbranch_scc1 L_work')
    sstamp()
    a('s_endpgm')
    a.label('L_work')
    a('s_barrier')
    PP = BUF
    D1 = 56
    for i in range(NWO):
        a(f'ds_read_b32 v{PP+i}, v{VT2} offset:{L_O+16*i}')
    a('s_waitcnt lgkmcnt(0)')
    for i in range(NWO):
        for rs, D in ((0, ACC), (1, D1)):
            bb = BB if rs == 0 else BB2
            tmp = QB + 2 + rs
            a(f'v_perm_b32 v{tmp}, v{PP+i}, v{PP+i}, s{94+rs}')
            for j in range(4):
                a(f'v_and_b32 v{bb+j}, v{tmp}, v{MK+j}')
            c = '0' if i == 0 else f'v[{D}:{D+3}]'
            a(f'v_mfma_f32_16x16x32_bf16 v[{D}:{D+3}], v[{WO+4*i}:{WO+4*i+3}], v[{bb}:{bb+3}], {c}')
    for r in range(4):
        a(f'v_cndmask_b32 v{ACC+r}, v{D1+r}, v{ACC+r}, s[92:93]')
    a(f'ds_write_b128 v{VT0}, v[{ACC}:{ACC+3}] offset:{L_P}')
    sstamp()
    a('s_waitcnt lgkmcnt(0)')
    a('s_barrier')
    a('s_endpgm')

    a.label('L_helper')
    if notail:
        a('s_endpgm')
    if prio:
        a('s_setprio 3')
    HB = 64
    XB = 136
    SNP = 32
    OLD = 52
    D0, D1 = 20, 56
    VQC, VQP, VEXP = 24, 25, 30
    a(f'v_lshrrev_b32 v{VT2}, 4, v{VL}')
    a(f'v_bfe_u32 v{VAL}, v{VL}, 3, 1')
    a(f'v_and_b32 v{VT3}, 7, v{VL}')
    a(f'v_lshl_add_u32 v{VT0}, v{VT2}, 1, v{VAL}')
    a(f'v_lshlrev_b32 v{VT0}, 13, v{VT0}')
    a(f'v_lshl_add_u32 v{VT0}, v{VT3}, 4, v{VT0}')
    a(f'v_mul_u32_u24 v{VT1}, 1152, v{VAL}')
    a(f'v_lshl_add_u32 v{VT1}, v{VT2}, 2, v{VT1}')
    a(f'v_lshlrev_b32 v{VQP}, 10, v{VAL}')
    a(f'v_lshl_add_u32 v{VQP}, v{VT2}, 7, v{VQP}')
    a(f'v_lshl_add_u32 v{VQP}, v{VT3}, 4, v{VQP}')
    a(f'v_mov_b32 v{VMT}, 0x{OOB:x}')
    a(f'v_cmp_gt_u32 vcc, 32, v{VL}')
    a(f'v_cndmask_b32 v{VQP}, v{VMT}, v{VQP}, vcc')
    a('s_and_b32 s25, s2, 15')
    a('s_and_b32 s26, s2, 3')
    a('s_bfe_u32 s27, s2, 0x20002')
    a('s_mul_i32 s28, s27, 144')
    a('s_lshl_b32 s29, s28, 13')
    a('s_lshl_b32 s31, s21, 9')
    a('s_add_u32 s29, s29, s31')
    a('s_lshl_b32 s31, s26, 7')
    a('s_add_u32 s29, s29, s31')
    a('s_lshl_b32 s28, s28, 1')
    a('s_lshl_b32 s91, s21, 13')
    a('s_lshl_b32 s92, s27, 11')
    a('s_add_u32 s92, s92, s91')
    a('s_lshl_b32 s31, s26, 8')
    a('s_add_u32 s92, s92, s31')
    a('s_lshl_b32 s31, s22, 10')
    a('s_add_u32 s91, s91, s31')
    a('s_add_u32 s93, s91, 4096')
    a('s_waitcnt lgkmcnt(0)')
    srd(a, 52, 10, 576 * 8192)
    srd(a, 40, 18, WS_BYTES)
    srd(a, 48, 4, 2304)
    def qload():
        for t in range(4):
            a(f'buffer_load_dwordx4 v[{SNP+4*t}:{SNP+4*t+3}], v{VOFF}, s[40:43], s{91 if t < 2 else 93} offen offset:{QP_OFF + 2048*(t&1)} sc1')
    qload()
    a(f'buffer_load_dwordx4 v[{OLD}:{OLD+3}], v{VQP}, s[40:43], s92 offen offset:{QP_OFF} sc1')
    for i in range(18):
        a(f'buffer_load_dword v{XB+i}, v{VT1}, s[48:51], s28 offen offset:{16*i}')
    for i in range(18):
        r = HB + i * 4
        a(f'buffer_load_dwordx4 v[{r}:{r+3}], v{VT0}, s[52:55], s29 offen {wnt}')
        a('s_add_u32 s29, s29, 0x10000')
    if b0 == 1:
        a('s_barrier')
    srd(a, 60, 14, 2304)
    srd(a, 64, 16, 256)
    for r in range(4):
        a(f'v_mov_b32 v{QA+r}, -1')
    a(f'v_lshlrev_b32 v{VMT}, 3, v{VL}')
    a('s_lshl_b32 s46, s2, 11')
    a(f's_add_u32 s46, s46, {AP_OFF}')
    a('s_lshl_b32 s47, s25, 13')
    a('s_lshl_b32 s31, s21, 9')
    a('s_add_u32 s47, s47, s31')
    a(f's_add_u32 s47, s47, {OP_OFF}')
    a('s_cmp_lt_u32 s25, 9')
    a(f's_cselect_b32 s47, s47, 0x{OOB:x}')
    VO32 = 3
    a(f'v_mov_b32 v{VO32}, 0x{OOB:x}')
    a(f'v_cmp_gt_u32 vcc, 32, v{VL}')
    a(f'v_cndmask_b32 v{VO32}, v{VO32}, v{VOFF}, vcc')
    a(f'buffer_store_dwordx4 v[{QA}:{QA+3}], v{VOFF}, s[40:43], s46 offen sc1')
    VMLS = 61
    a(f'v_and_b32 v{VMLS}, 0x37, v{VL}')
    a(f'v_cmp_eq_u32 vcc, 0, v{VMLS}')
    a(f'v_mov_b32 v{VMLS}, 0x{OOB:x}')
    a(f'v_cndmask_b32 v{VMLS}, v{VMLS}, v{VL}, vcc')
    a(f'buffer_store_dwordx2 v[{QA}:{QA+1}], v{VMLS}, s[40:43], s46 offen offset:1024 sc1')
    a(f'buffer_store_dwordx4 v[{QA}:{QA+3}], v{VO32}, s[40:43], s47 offen sc1')
    a(f'v_mov_b32 v{QB}, {tot_static*WPP}')
    a(f'v_mov_b32 v{QB+1}, 0x{OOB:x}')
    a('s_cmp_eq_u32 s23, 0' if not noq else 's_cmp_eq_u32 s23, 99')
    a('s_cselect_b64 vcc, -1, 0')
    a(f'v_cndmask_b32 v{QB+1}, v{QB+1}, v{VAO}, vcc')
    a(f'buffer_store_dword v{QB}, v{QB+1}, s[40:43], s44 offen sc1')
    if b0 == 2:
        a('s_barrier')
    a('s_mov_b32 s94, 0x01000100')
    a('s_mov_b32 s95, 0x03020302')
    a('s_waitcnt vmcnt(40)')
    def packbits(dst):
        a(f'v_lshlrev_b32 v{dst}, 31, v{SNP}')
        for i in range(1, 16):
            a(f'v_alignbit_b32 v{dst}, v{SNP+i}, v{dst}, 1')
    packbits(VEXP)
    for r in range(4):
        a(f'v_not_b32 v{OLD+r}, v{OLD+r}')
    if b0 == 3:
        a('s_waitcnt vmcnt(4)')
        a('s_barrier')
    for i in range(18):
        if i == 0:
            a('s_waitcnt vmcnt(22)')
        for rs in (0, 1):
            bb = BB if rs == 0 else BB2
            tmp = QB + 2 + rs
            a(f'v_perm_b32 v{tmp}, v{XB+i}, v{XB+i}, s{94+rs}')
            for j in range(4):
                a(f'v_and_b32 v{bb+j}, v{tmp}, v{MK+j}')
        a(f's_waitcnt vmcnt({4 + 17 - i})')
        if i == 17 and stamp:
            a('s_memrealtime s[96:97]')
        for rs, D in ((0, D0), (1, D1)):
            bb = BB if rs == 0 else BB2
            r = HB + i * 4
            c = '0' if i == 0 else f'v[{D}:{D+3}]'
            a(f'v_mfma_f32_16x16x32_bf16 v[{D}:{D+3}], v[{r}:{r+3}], v[{bb}:{bb+3}], {c}')
    for r in range(4):
        a(f'v_permlane32_swap_b32 v{D1+r}, v{D0+r}')
    for r in range(4):
        a(f'v_mov_b32 v{SNP+r}, v{D1+r}')
    for r in range(4):
        a(f'v_permlane32_swap_b32 v{SNP+r}, v{D1+r}')
    for r in range(4):
        a(f'v_add_f32 v{D0+r}, v{D0+r}, v{D1+r}')
    for r in range(4):
        a(f'v_bfi_b32 v{D0+r}, 1, v{OLD+r}, v{D0+r}')
    a(f'v_lshlrev_b32 v{VQC}, 7, v{VT2}')
    a(f'v_lshl_add_u32 v{VQC}, v{VAL}, 6, v{VQC}')
    a(f'v_lshl_add_u32 v{VQC}, v{VT3}, 1, v{VQC}')
    a(f'v_mov_b32 v{QB}, 1')
    a('s_lshl_b32 s28, s21, 4')
    a('s_mov_b32 s31, 0x400000')
    a('s_waitcnt vmcnt(0)')
    a(f'buffer_store_dwordx4 v[{D0}:{D0+3}], v{VQP}, s[40:43], s92 offen offset:{QP_OFF} sc1')
    if stamp:
        a('s_memrealtime s[72:73]')
    qload()
    a('s_waitcnt vmcnt(4)')
    a(f'buffer_atomic_add v{QB}, v{VAO}, s[64:67], s28 offen sc1')
    a('s_mov_b32 s29, 0')
    a('s_waitcnt vmcnt(1)')
    a('s_branch L_qcheck')
    a.label('L_qpoll')
    a('s_and_b32 s26, s31, 3')
    a('s_cmp_lg_u32 s26, 0')
    a('s_cbranch_scc1 L_qnocnt')
    a(f'buffer_load_dword v{QB+1}, v{VAO}, s[64:67], s28 offen sc1')
    a('s_waitcnt vmcnt(0)')
    a(f'v_readfirstlane_b32 s29, v{QB+1}')
    a.label('L_qnocnt')
    qload()
    a('s_waitcnt vmcnt(0)')
    a('s_cmp_ge_u32 s29, 16')
    a('s_cbranch_scc1 L_qgo')
    a.label('L_qcheck')
    packbits(VT1)
    a(f'v_xor_b32 v{VT1}, v{VT1}, v{VEXP}')
    a(f'v_lshrrev_b32 v{VT1}, 16, v{VT1}')
    a(f'v_cmp_ne_u32 vcc, 0xffff, v{VT1}')
    a('s_sub_u32 s31, s31, 1')
    a('s_cbranch_scc1 L_qgo')
    a('s_cmp_lg_u64 vcc, 0')
    a('s_cbranch_scc1 L_qpoll')
    a.label('L_qgo')
    if stamp:
        a('s_memrealtime s[74:75]')
    for r in range(4):
        a(f'v_add_f32 v{SNP+r}, v{SNP+r}, v{SNP+4+r}')
        a(f'v_add_f32 v{SNP+8+r}, v{SNP+8+r}, v{SNP+12+r}')
    for r in range(4):
        a(f'v_add_f32 v{SNP+r}, v{SNP+r}, v{SNP+8+r}')
    a(f'v_cvt_pk_bf16_f32 v{SNP}, v{SNP}, v{SNP+1}')
    a(f'v_cvt_pk_bf16_f32 v{SNP+2}, v{SNP+2}, v{SNP+3}')
    a(f'ds_write_b16 v{VQC}, v{SNP} offset:{L_Q}')
    a(f'ds_write_b16_d16_hi v{VQC}, v{SNP} offset:{L_Q+16}')
    a(f'ds_write_b16 v{VQC}, v{SNP+2} offset:{L_Q+32}')
    a(f'ds_write_b16_d16_hi v{VQC}, v{SNP+2} offset:{L_Q+48}')
    a('s_waitcnt lgkmcnt(0)')
    a('s_barrier')
    a('s_cmp_lg_u32 s21, s25')
    a('s_cbranch_scc1 L_nofin0')
    a('s_cmp_ge_u32 s25, 9')
    a('s_cbranch_scc1 L_nofin0')
    a(f'v_lshlrev_b32 v{VT1}, 4, v{VL}')
    a(f'v_cmp_gt_u32 vcc, 16, v{VL}')
    a(f'v_cndmask_b32 v{VT3}, 16, 0, vcc')
    a.label('L_allpoll')
    a(f'buffer_load_dword v{QB+1}, v{VT1}, s[64:67], 0 offen sc1')
    a('s_waitcnt vmcnt(0)')
    a(f'v_add_u32 v{QB+1}, v{QB+1}, v{VT3}')
    a(f'v_cmp_gt_u32 vcc, 16, v{QB+1}')
    a('s_sub_u32 s31, s31, 1')
    a('s_cbranch_scc1 L_nofin0')
    a('s_sleep 8')
    a('s_cmp_lg_u64 vcc, 0')
    a('s_cbranch_scc1 L_allpoll')
    a.label('L_nofin0')
    a('s_lshl_b32 s27, s21, 15')
    a(f's_add_u32 s27, s27, {AP_OFF}')
    for i in range(8):
        a(f's_add_u32 s{80+i}, s27, {4096*i}')
    a(f'v_lshlrev_b32 v{VNMC}, 3, v{VAL}')
    a(f'v_lshlrev_b32 v{VT0}, 8, v{VAL}')
    a(f'v_lshl_add_u32 v{VT0}, v{VT2}, 6, v{VT0}')
    a(f'v_and_b32 v{VT3}, 7, v{VL}')
    a(f'v_lshl_add_u32 v{VT0}, v{VT3}, 1, v{VT0}')
    a(f'v_mov_b32 v{VDUM}, 0xfffffffe')
    a('s_barrier')
    if stamp:
        a('s_memrealtime s[76:77]')
    RB = 64
    for w in range(NW):
        a(f'ds_read_b128 v[{RB+4*w}:{RB+4*w+3}], v{VOFF} offset:{L_P+1536*w}')
        a(f'ds_read_b64 v[{RB+4*NW+2*w}:{RB+4*NW+2*w+1}], v{VMT} offset:{L_P+1024+1536*w}')
    a('s_waitcnt lgkmcnt(0)')
    combine(a, NW, RB, RB + 4 * NW, RB + 4 * NW + 1, VM, VLS, ACC, 's30', 2)
    for r in (ACC, ACC+1, ACC+2, ACC+3, VM, VLS):
        a(f'v_min_u32 v{r}, v{r}, v{VDUM}')
    a(f'buffer_store_dwordx4 v[{ACC}:{ACC+3}], v{VOFF}, s[40:43], s46 offen sc1')
    a(f'buffer_store_dwordx2 v[{VM}:{VLS}], v{VMLS}, s[40:43], s46 offen offset:1024 sc1')
    def hstamp(final):
        if not stamp:
            return
        a('s_memrealtime s[88:89]')
        a('s_waitcnt lgkmcnt(0)')
        a('s_lshl_b32 s90, s2, 4')
        a('s_add_u32 s90, s90, 14')
        a('s_lshl_b32 s90, s90, 5')
        a('s_add_u32 s90, s90, 0x800000')
        for i, sr in enumerate((70, 72, 74, 76, 78, 88)):
            a(f'v_mov_b32 v{S0+i}, s{sr}')
        a(f'v_mov_b32 v{S0+6}, {final}')
        a(f'v_mov_b32 v{S0+7}, s96')
        a(f'buffer_store_dwordx4 v[{S0}:{S0+3}], v{VAO}, s[40:43], s90 offen')
        a(f'buffer_store_dwordx4 v[{S0+4}:{S0+7}], v{VAO}, s[40:43], s90 offen offset:16')
    a('s_cmp_lt_u32 s25, 9')
    a('s_cbranch_scc1 L_hwork')
    if stamp:
        a('s_mov_b64 s[78:79], s[76:77]')
    hstamp(0)
    a('s_endpgm')
    a.label('L_hwork')
    RM = RB + 64
    CK = 32
    a('s_mov_b32 s28, 0xffff')
    a.label('L_appoll')
    for i in range(16):
        a(f's_bitcmp1_b32 s28, {i}')
        a(f's_cbranch_scc0 L_apskip{i}')
        a(f'buffer_load_dwordx4 v[{RB+4*i}:{RB+4*i+3}], v{VOFF}, s[40:43], s{80+i//2} offen offset:{2048*(i&1)} sc1')
        a(f'buffer_load_dwordx2 v[{RM+2*i}:{RM+2*i+1}], v{VNMC}, s[40:43], s{80+i//2} offen offset:{2048*(i&1)+1024} sc1')
        a.label(f'L_apskip{i}')
    a('s_waitcnt vmcnt(0)')
    for i in range(16):
        a(f'v_max3_u32 v{CK+i}, v{RB+4*i}, v{RB+4*i+1}, v{RB+4*i+2}')
    for i in range(16):
        a(f'v_max3_u32 v{CK+i}, v{RB+4*i+3}, v{RM+2*i}, v{CK+i}')
    for i in range(16):
        a(f'v_max_u32 v{CK+i}, v{RM+2*i+1}, v{CK+i}')
    a(f'v_max3_u32 v{VT1}, v{CK}, v{CK+1}, v{CK+2}')
    for i in range(3, 15, 2):
        a(f'v_max3_u32 v{VT1}, v{CK+i}, v{CK+i+1}, v{VT1}')
    a(f'v_max_u32 v{VT1}, v{CK+15}, v{VT1}')
    a(f'v_cmp_eq_u32 vcc, -1, v{VT1}')
    a('s_cmp_eq_u64 vcc, 0')
    a('s_cbranch_scc1 L_apgo')
    a('s_mov_b32 s28, 0')
    for i in range(16):
        a(f'v_cmp_eq_u32 vcc, -1, v{CK+i}')
        a('s_cmp_lg_u64 vcc, 0')
        a(f's_cselect_b32 s29, {1 << i}, 0')
        a('s_or_b32 s28, s28, s29')
    a('s_sub_u32 s31, s31, 1')
    a('s_cbranch_scc1 L_apgo')
    if slp:
        a(f's_sleep {slp}')
    a('s_branch L_appoll')
    a.label('L_apgo')
    if stamp:
        a('s_memrealtime s[78:79]')
    AC2, VM2, VLS2 = 32, 36, 37
    combine(a, 8, RB, RM, RM + 1, VM, VLS, ACC, 's30', 2)
    combine(a, 8, RB + 32, RM + 16, RM + 17, VM2, VLS2, AC2, 's30', 2)
    a(f'v_rcp_f32 v{VLS}, v{VLS}')
    a(f'v_rcp_f32 v{VLS2}, v{VLS2}')
    for r in range(4):
        a(f'v_mul_f32 v{ACC+r}, v{ACC+r}, v{VLS}')
        a(f'v_mul_f32 v{AC2+r}, v{AC2+r}, v{VLS2}')
    for bb, A in ((0, ACC), (1, AC2)):
        a(f'v_cvt_pk_bf16_f32 v{A}, v{A}, v{A+1}')
        a(f'v_cvt_pk_bf16_f32 v{A+2}, v{A+2}, v{A+3}')
    for bb, A in ((0, ACC), (1, AC2)):
        o = L_O + 512 * bb
        a(f'ds_write_b16 v{VT0}, v{A} offset:{o}')
        a(f'ds_write_b16_d16_hi v{VT0}, v{A} offset:{o+16}')
        a(f'ds_write_b16 v{VT0}, v{A+2} offset:{o+32}')
        a(f'ds_write_b16_d16_hi v{VT0}, v{A+2} offset:{o+48}')
    a('s_waitcnt lgkmcnt(0)')
    a('s_barrier')
    a('s_barrier')
    for w in range(NW):
        a(f'ds_read_b128 v[{RB+4*w}:{RB+4*w+3}], v{VOFF} offset:{L_P+1024*w}')
    a('s_waitcnt lgkmcnt(0)')
    for w in range(1, NW):
        for r in range(4):
            a(f'v_add_f32 v{RB+r}, v{RB+r}, v{RB+4*w+r}')
    def addhalves(R, Tm):
        for r in range(4):
            a(f'v_mov_b32 v{Tm+r}, v{R+r}')
        for r in range(4):
            a(f'v_permlane32_swap_b32 v{R+r}, v{Tm+r}')
        for r in range(4):
            a(f'v_add_f32 v{R+r}, v{R+r}, v{Tm+r}')
    addhalves(RB, RB + 4)
    for r in range(4):
        a(f'v_min_u32 v{RB+r}, v{RB+r}, v{VDUM}')
    a(f'buffer_store_dwordx4 v[{RB}:{RB+3}], v{VO32}, s[40:43], s47 offen sc1')
    a('s_cmp_eq_u32 s21, s25')
    a('s_cbranch_scc1 L_final')
    hstamp(0)
    a('s_endpgm')
    a.label('L_final')
    a(f'v_mul_u32_u24 v{VT1}, 1152, v{VAL}')
    a(f'v_lshl_add_u32 v{VT1}, v{VT2}, 6, v{VT1}')
    a(f'v_lshl_add_u32 v{VT1}, v{VT3}, 1, v{VT1}')
    a(f'v_mov_b32 v{VT0}, 0x{OOB:x}')
    a(f'v_cmp_gt_u32 vcc, 32, v{VL}')
    a(f'v_cndmask_b32 v{VT1}, v{VT0}, v{VT1}, vcc')
    a('s_lshl_b32 s26, s25, 7')
    a('s_lshl_b32 s27, s25, 13')
    a(f's_add_u32 s27, s27, {OP_OFF}')
    a('s_add_u32 s28, s27, 4096')
    RF = RB + 8
    a.label('L_oppoll')
    for i in range(8):
        a(f'buffer_load_dwordx4 v[{RF+4*i}:{RF+4*i+3}], v{VOFF}, s[40:43], s{27 + i//4} offen offset:{1024*(i&3)} sc1')
    a('s_waitcnt vmcnt(0)')
    anymarker(a, list(range(RF, RF + 32)), VT0, 'L_oppoll', 's31', 'L_opgo')
    a.label('L_opgo')
    for step in (4, 2, 1):
        for i in range(step):
            for r in range(4):
                a(f'v_add_f32 v{RF+4*i+r}, v{RF+4*i+r}, v{RF+4*(i+step)+r}')
    addhalves(RF, RF + 4)
    a(f'v_cvt_pk_bf16_f32 v{RF}, v{RF}, v{RF+1}')
    a(f'v_cvt_pk_bf16_f32 v{RF+2}, v{RF+2}, v{RF+3}')
    a(f'buffer_store_short v{RF}, v{VT1}, s[60:63], s26 offen')
    a(f'buffer_store_short_d16_hi v{RF}, v{VT1}, s[60:63], s26 offen offset:16')
    a(f'buffer_store_short v{RF+2}, v{VT1}, s[60:63], s26 offen offset:32')
    a(f'buffer_store_short_d16_hi v{RF+2}, v{VT1}, s[60:63], s26 offen offset:48')
    hstamp(1)
    a.label('L_done')
    a('s_endpgm')
    nv = (a.maxv + 1 + 7) // 8 * 8
    s = HEADER
    if noq:
        s += f'; cntinit={tot_static*WPP}\n'
    s += f'; @launch grid=(256,1,1) block=({64*(NW+1)},1,1) lds={lds_bytes}\n'
    s += '.amdgcn_target "amdgcn-amd-amdhsa--gfx950"\n.text\n'
    s += a.text()
    s += f""".section .rodata,"a"
.p2align 6
.amdhsa_kernel {kn}
  .amdhsa_next_free_vgpr {nv}
  .amdhsa_next_free_sgpr 100
  .amdhsa_accum_offset {nv}
  .amdhsa_group_segment_fixed_size 0
  .amdhsa_kernarg_size 64
  .amdhsa_user_sgpr_count 2
  .amdhsa_user_sgpr_kernarg_segment_ptr 1
  .amdhsa_system_sgpr_workgroup_id_x 1
.end_amdhsa_kernel
"""
    return s

if __name__ == '__main__':
    ap = argparse.ArgumentParser()
    ap.add_argument('--T', type=int, default=4)
    ap.add_argument('--NBUF', type=int, default=2)
    ap.add_argument('--NW', type=int, default=4)
    ap.add_argument('--nreg', type=int, default=1)
    ap.add_argument('--ch', type=int, default=1)
    ap.add_argument('--cache', default='nt')
    ap.add_argument('--rot', type=int, default=0)
    ap.add_argument('--stamp', type=int, default=0)
    ap.add_argument('--b0', type=int, default=0)
    ap.add_argument('--prio', type=int, default=1)
    ap.add_argument('--pf', type=int, default=0)
    ap.add_argument('--NS', type=int, default=0)
    ap.add_argument('--noq', type=int, default=0)
    ap.add_argument('--static', type=int, default=0)
    ap.add_argument('--slp', type=int, default=0)
    ap.add_argument('--nocomp', type=int, default=0)
    ap.add_argument('--notail', type=int, default=0)
    ap.add_argument('--NL', type=int, default=0)
    ap.add_argument('--wnt', default='nt')
    ap.add_argument('--burst', type=int, default=0)
    ap.add_argument('--fs', type=int, default=0)
    ap.add_argument('-o', default=f'cdna_kernels/{NAME}.s')
    args = ap.parse_args()
    open(args.o, 'w').write(gen(args.T, args.NBUF, args.NW, args.nreg, args.ch, args.cache, args.rot, args.stamp, args.b0, args.prio, args.pf, args.NS, args.noq, args.static, args.slp, args.nocomp, args.notail, args.NL, args.wnt, args.burst, args.fs))
```

```python
import sys, struct, argparse
sys.path.insert(0, 'tools')
from asmlib import Asm

NAME = 'standalone__gqa_block_cached__decode'
CSCALE = (128 ** -0.5) * 1.4426950408889634
def f32bits(x): return struct.unpack('<I', struct.pack('<f', x))[0]

QP_OFF = 0
AP_OFF = 1 << 20
OP_OFF = 2 << 20
CNT_OFF = 3 << 20
WS_BYTES = 1 << 30
OOB = 0x40000000

HEADER = """; Kernarg layout for this problem (64 bytes, ptrs only, base s[0:1]):
;   offset  16: d_in[2] v_cache  shape=(2, 16, 32768, 128) dtype=bfloat16
"""

def srd(a, d, lo, nbytes):
    a(f's_mov_b32 s{d}, s{lo}')
    a(f's_and_b32 s{d+1}, s{lo+1}, 0xffff')
    a(f's_mov_b32 s{d+2}, 0x{nbytes:x}')
    a(f's_mov_b32 s{d+3}, 0x00020000')

def masks(a, vl, vm, vt0, vt1):
    a(f'v_and_b32 v{vt0}, 1, v{vl}')
    a(f'v_lshlrev_b32 v{vt0}, 4, v{vt0}')
    a(f'v_mov_b32 v{vt1}, 0xffff')
    a(f'v_lshlrev_b32 v{vt0}, v{vt0}, v{vt1}')
    a(f'v_bfe_u32 v{vt1}, v{vl}, 1, 2')
    for j in range(4):
        a(f'v_cmp_eq_u32 vcc, {j}, v{vt1}')
        a(f'v_cndmask_b32 v{vm+j}, 0, v{vt0}, vcc')

def combine(a, n, RO, RM, RL, VM, VLS, ACC, sc, mstride=1):
    M = lambda i: RM + i * mstride
    L = lambda i: RL + i * mstride
    a(f'v_max_f32 v{VM}, v{M(0)}, v{M(1)}')
    for i in range(2, n, 2):
        a(f'v_max3_f32 v{VM}, v{M(i)}, v{M(i+1)}, v{VM}')
    for i in range(n):
        a(f'v_sub_f32 v{M(i)}, v{M(i)}, v{VM}')
    for i in range(n):
        a(f'v_mul_f32 v{M(i)}, {sc}, v{M(i)}')
    for i in range(n):
        a(f'v_exp_f32 v{M(i)}, v{M(i)}')
    a(f'v_mul_f32 v{VLS}, v{M(0)}, v{L(0)}')
    for r in range(4):
        a(f'v_mul_f32 v{ACC+r}, v{M(0)}, v{RO+r}')
    for i in range(1, n):
        a(f'v_fmac_f32 v{VLS}, v{M(i)}, v{L(i)}')
        for r in range(4):
            a(f'v_fmac_f32 v{ACC+r}, v{M(i)}, v{RO+4*i+r}')

def anymarker(a, regs, vt, label_retry, scnt, label_giveup):
    a(f'v_max_u32 v{vt}, v{regs[0]}, v{regs[1]}')
    for i in range(2, len(regs) - 1, 2):
        a(f'v_max3_u32 v{vt}, v{regs[i]}, v{regs[i+1]}, v{vt}')
    if len(regs) % 2:
        a(f'v_max_u32 v{vt}, v{regs[-1]}, v{vt}')
    a(f'v_cmp_eq_u32 vcc, -1, v{vt}')
    a(f's_sub_u32 {scnt}, {scnt}, 1')
    a(f's_cbranch_scc1 {label_giveup}')
    a('s_cmp_lg_u64 vcc, 0')
    a(f's_cbranch_scc1 {label_retry}')

def gen(T=4, NBUF=2, NW=4, nreg=1, ch=1, cache='nt', rot=0, stamp=0, b0=0, prio=1, pf=0, NS=0, noq=0, static=0, slp=0, nocomp=0, notail=0, NL=0, wnt='nt', burst=0, fs=0):
    a = Asm()
    kn = NAME + '_kernel'
    a.raw(f'.globl {kn}\n.p2align 8\n.type {kn},@function\n{kn}:')
    NTP = 32768 // (4 * T)
    tile_bytes = T * 1024
    tsh = tile_bytes.bit_length() - 1
    WPP = 8 * NW
    BUF = 64
    base_static = 2 * NBUF + NS + NL
    first_static = 1 if (NS and fs >= base_static + NBUF) else 0
    n1 = max(0, (fs - base_static - first_static * NBUF) // NBUF)
    tot_static = base_static + (first_static + n1) * NBUF
    def kreg(buf, i): return BUF + buf * 8 * T + 4 * i
    def vreg(buf, i): return BUF + buf * 8 * T + 4 * T + 4 * i
    VL, VOFF = 1, 2
    nvo = (T + 3) // 4
    assert nvo <= 2
    QA, QB, MK, ACC = 8, 12, 16, 20
    VM, VLS, VMT, VT0, VT1, VAL, VNMC = 24, 25, 26, 27, 28, 29, 30
    VAO = 31
    S0, SN = 32, 40
    BB, BB2 = 4, 48
    VA = 52
    VDUM = 60
    VT2, VT3 = 62, 63
    assert T <= 8 and NBUF <= 8
    SOFF = 80
    L_Q = 0
    L_O = 512
    L_P = 2048
    L_S = (L_P + NW * 1536 + 1023) // 1024 * 1024
    lds_bytes = L_S + NW * NL * 2 * tile_bytes
    assert lds_bytes <= 160 * 1024
    assert NL == 0 or (T == 4 and NS >= 1)
    a('s_cmp_ge_u32 s2, 256')
    a('s_cbranch_scc1 L_done')
    if stamp:
        a('s_memrealtime s[70:71]')
    a('s_load_dwordx16 s[4:19], s[0:1], 0')
    a(f'v_and_b32 v{VL}, 63, v0')
    a(f'v_lshrrev_b32 v{VT0}, 6, v0')
    a(f'v_lshlrev_b32 v{VOFF}, 4, v{VL}')
    for j in range(1, nvo):
        a(f'v_add_u32 v{VOFF+j}, {4096*j}, v{VOFF}')
    a(f'v_readfirstlane_b32 s20, v{VT0}')
    a(f'v_mov_b32 v{VAO}, 0x{OOB:x}')
    a(f'v_cmp_eq_u32 vcc, 0, v{VL}')
    a(f'v_cndmask_b32 v{VAO}, v{VAO}, 0, vcc')
    a('s_lshr_b32 s21, s2, 4')
    a('s_bfe_u32 s22, s2, 0x10003')
    a('s_and_b32 s23, s2, 7')
    a('s_lshl_b32 s24, s22, 4')
    a('s_add_u32 s24, s24, s21')
    a('s_lshl_b32 s44, s24, 8')
    a(f's_add_u32 s44, s44, {CNT_OFF}')
    a(f's_mul_i32 s45, s24, {rot}')
    a('s_lshl_b32 s24, s24, 23')
    a(f's_mov_b32 s30, 0x{f32bits(CSCALE):x}')
    masks(a, VL, MK, VT0, VT1)
    a('s_cmp_eq_u32 s20, 0')
    a('s_cbranch_scc1 L_helper')

    lr, lc = nreg.bit_length() - 1, ch.bit_length() - 1
    ln = NTP.bit_length() - 1
    def tick2off(st, sd):
        a(f's_add_u32 s29, {st}, s45')
        a(f's_and_b32 s29, s29, {NTP-1}')
        if nreg > 1:
            a(f's_bfe_u32 s31, s29, 0x{(lr << 16) | lc:x}')
            a(f's_lshl_b32 s31, s31, {ln-lr}')
            a(f's_lshr_b32 s28, s29, {lr+lc}')
            a(f's_lshl_b32 s28, s28, {lc}')
            a(f's_or_b32 s31, s31, s28')
            a(f's_and_b32 s29, s29, {ch-1}')
            a(f's_or_b32 s29, s29, s31')
        a(f's_lshl_b32 s29, s29, {tsh}')
        a('s_add_u32 s29, s29, s24')
        a(f's_cmp_lt_u32 {st}, {NTP}')
        a(f's_cselect_b32 {sd}, s29, 0x10000000')
    a(f's_mul_i32 s25, s23, {NW}')
    a('s_add_u32 s25, s25, s20')
    a('s_sub_u32 s25, s25, 1')
    assert NBUF + NS + NL <= 12
    for b in range(NBUF + NS + NL):
        a(f's_add_u32 s26, s25, {b*WPP}')
        tick2off('s26', f's{SOFF+b}')
    for b in range(NBUF):
        a(f's_add_u32 s26, s25, {(NBUF+NS+NL+b)*WPP}')
        a(f'v_mov_b32 v{VA+b}, s26')
    if NL:
        a('s_sub_u32 s27, s20, 1')
        a(f's_mul_i32 s47, s27, {NL*2*tile_bytes}')
        a(f's_add_u32 s47, s47, {L_S}')
        a(f'v_add_u32 v{VT2}, s47, v{VOFF}')
    a(f'v_and_b32 v{VT0}, 15, v{VL}')
    a(f'v_lshlrev_b32 v{VT0}, 4, v{VT0}')
    a(f'v_bfe_u32 v{VT1}, v{VL}, 3, 1')
    a(f'v_lshl_add_u32 v{VT0}, v{VT1}, 8, v{VT0}')
    a(f'v_xor_b32 v{VT1}, 0x100, v{VT0}')
    a(f'v_mov_b32 v{VM}, 0xff800000')
    a(f'v_mov_b32 v{VLS}, 0')
    for r in range(4):
        a(f'v_mov_b32 v{ACC+r}, 0')
    a(f'v_mov_b32 v{VDUM+1}, 0x{OOB:x}')
    a('s_waitcnt lgkmcnt(0)')
    srd(a, 32, 6, 1 << 28)
    srd(a, 36, 8, 1 << 28)
    srd(a, 40, 18, WS_BYTES)
    srd(a, 56, 12, 4096 * 1152)
    if b0:
        a('s_barrier')
    Q = []
    def issueK(buf):
        for i in range(T):
            a(f'buffer_load_dwordx4 v[{kreg(buf,i)}:{kreg(buf,i)+3}], v{VOFF+i//4}, s[32:35], s{SOFF+buf} offen offset:{(i%4)*1024} {cache}')
            Q.append(('K', buf))
    def issueV(buf):
        for i in range(T):
            a(f'buffer_load_dwordx4 v[{vreg(buf,i)}:{vreg(buf,i)+3}], v{VOFF+i//4}, s[36:39], s{SOFF+buf} offen offset:{(i%4)*1024} {cache}')
            Q.append(('V', buf))
    def waitfor(tag):
        idx = max(i for i, t in enumerate(Q) if t == tag)
        n = len(Q) - 1 - idx
        a(f's_waitcnt vmcnt({min(n, 63)})')
        del Q[:idx + 1]
        return n
    for b in range(NBUF + NS):
        if pf and b >= pf:
            waitfor(('V', b - pf))
        if b < NBUF:
            a(f'buffer_load_dword v{VDUM}, v{VDUM+1}, s[40:43], 0 offen')
            Q.append(('A', b))
        issueK(b); issueV(b)
        assert len(Q) <= 63
    for k in range(NL):
        b = NBUF + NS + k
        if pf and b >= pf:
            waitfor(('V', b - pf))
        for tag, sr, off in (('K', 32, 0), ('V', 36, tile_bytes)):
            a(f's_add_u32 m0, s47, {k*2*tile_bytes + off}')
            a('s_nop 0')
            for i in range(T):
                a(f'buffer_load_dwordx4 v{VOFF}, s[{sr}:{sr+3}], s{SOFF+b} offen offset:{i*1024} {cache} lds')
                Q.append((tag, b))
        assert len(Q) <= 63
    if not noq:
        a('s_barrier')
    a(f'ds_read_b128 v[{QA}:{QA+3}], v{VT0} offset:{L_Q}')
    a(f'ds_read_b128 v[{QB}:{QB+3}], v{VT1} offset:{L_Q}')
    if stamp:
        a('s_memrealtime s[72:73]')
    a('s_waitcnt lgkmcnt(0)')
    w1 = T + (NBUF - 1) * (2 * T + 1)
    w2 = (NBUF - 1) * (2 * T + 1) + T + 1
    if burst:
        w2 = (NBUF - 1) * (2 * T + 1)
    assert w2 <= 63
    a_real = a
    def tile(buf, mode):
        refill = mode != 'stash'
        a0 = a_real
        def a(t):
            op = t.split()[0]
            if nocomp & 1 and op.startswith('v_dot2'): return
            if nocomp & 2 and op.startswith('v_') and not op.startswith('v_dot2') and not op.startswith('v_mfma') and 'readfirstlane' not in op and f'v{VA+buf},' not in t: return
            if nocomp & 4 and op.startswith('v_mfma'): return
            a0(t)
        st = static or mode == 'sloop' or (mode == 'first' and first_static)
        if mode == 'sloop':
            a(f's_waitcnt vmcnt({w1})')
        elif mode == 'loop':
            a(f's_cmp_ge_u32 s{SOFF+buf}, 0x10000000')
            a('s_cbranch_scc1 L_exit')
            a(f's_waitcnt vmcnt({w1})')
        elif ('K', buf) in Q:
            waitfor(('K', buf))
        if refill:
            a(f'v_readfirstlane_b32 s26, v{VA+buf}')
        for i in range(T):
            k = kreg(buf, i)
            for j in range(4):
                c = '0' if j == 0 else f'v{S0+i}'
                a(f'v_dot2_f32_bf16 v{S0+i}, v{k+j}, v{QA+j}, {c}')
                c = '0' if j == 0 else f'v{SN+i}'
                a(f'v_dot2_f32_bf16 v{SN+i}, v{k+j}, v{QB+j}, {c}')
        vpend = ('V', buf) in Q
        if vpend:
            for i, t in enumerate(Q):
                if t == ('V', buf): Q[i] = ('Vold', buf)
        def refillK():
            if st:
                a(f'v_add_u32 v{VA+buf}, {NBUF*WPP}, v{VA+buf}')
                tick2off('s26', f's{SOFF+buf}')
                a(f'buffer_load_dword v{VDUM}, v{VDUM+1}, s[40:43], 0 offen')
            else:
                a(f'v_mov_b32 v{VA+buf}, 1')
                tick2off('s26', f's{SOFF+buf}')
                a(f'buffer_atomic_add v{VA+buf}, v{VAO}, s[40:43], s44 offen sc0 sc1')
            Q.append(('A', buf))
            issueK(buf)
        if refill and not burst:
            refillK()
        for i in range(T):
            a(f'v_add_f32_dpp v{S0+i}, v{SN+i}, v{S0+i} row_ror:8 row_mask:0xf bank_mask:0xf')
        for i in range(T):
            a(f'v_add_f32_dpp v{S0+i}, v{S0+i}, v{S0+i} row_half_mirror row_mask:0xf bank_mask:0xf')
        for i in range(T):
            a(f'v_add_f32_dpp v{S0+i}, v{S0+i}, v{S0+i} quad_perm:[1,0,3,2] row_mask:0xf bank_mask:0xf')
        for i in range(T):
            a(f'v_add_f32_dpp v{S0+i}, v{S0+i}, v{S0+i} quad_perm:[2,3,0,1] row_mask:0xf bank_mask:0xf')
        a(f'v_max3_f32 v{VMT}, v{S0}, v{S0+1}, v{VM}')
        for i in range(2, T, 2):
            a(f'v_max3_f32 v{VMT}, v{S0+i}, v{S0+i+1}, v{VMT}')
        a(f'v_mov_b32 v{VT0}, v{VMT}')
        a(f'v_permlane16_swap_b32 v{VMT}, v{VT0}')
        a(f'v_max_f32 v{VMT}, v{VMT}, v{VT0}')
        a(f'v_mov_b32 v{VT0}, v{VMT}')
        a(f'v_permlane32_swap_b32 v{VMT}, v{VT0}')
        a(f'v_max_f32 v{VMT}, v{VMT}, v{VT0}')
        a(f'v_sub_f32 v{VT0}, v{VM}, v{VMT}')
        a(f'v_mul_f32 v{VT0}, s30, v{VT0}')
        a(f'v_exp_f32 v{VAL}, v{VT0}')
        a(f'v_mul_f32 v{VNMC}, s30, v{VMT}')
        a(f'v_mov_b32 v{VM}, v{VMT}')
        for i in range(T):
            a(f'v_fma_f32 v{S0+i}, v{S0+i}, s30, -v{VNMC}')
        for i in range(T):
            a(f'v_exp_f32 v{S0+i}, v{S0+i}')
        for r in range(4):
            a(f'v_mul_f32 v{ACC+r}, v{ACC+r}, v{VAL}')
        a(f'v_mul_f32 v{VLS}, v{VLS}, v{VAL}')
        for i in range(T):
            a(f'v_add_f32 v{VLS}, v{VLS}, v{S0+i}')
            a(f'v_cvt_pk_bf16_f32 v{SN+i}, v{S0+i}, v{S0+i}')
        if mode in ('loop', 'sloop'):
            a(f's_waitcnt vmcnt({w2})')
        elif vpend:
            waitfor(('Vold', buf))
        for i in range(T):
            bb = BB if i % 2 == 0 else BB2
            for j in range(4):
                a(f'v_and_b32 v{bb+j}, v{SN+i}, v{MK+j}')
            v = vreg(buf, i)
            a(f'v_mfma_f32_16x16x32_bf16 v[{ACC}:{ACC+3}], v[{v}:{v+3}], v[{bb}:{bb+3}], v[{ACC}:{ACC+3}]')
        if refill:
            if burst:
                refillK()
            issueV(buf)
    if NS:
        for b in range(NBUF):
            tile(b, 'first')
        for b in range(NBUF, NBUF + NS):
            tile(b, 'stash')
        def readback(k):
            b = NBUF + NS + k
            dst = NBUF + (k % NS)
            if ('V', b) in Q:
                waitfor(('V', b))
            for i in range(T):
                a(f'ds_read_b128 v[{kreg(dst,i)}:{kreg(dst,i)+3}], v{VT2} offset:{k*2*tile_bytes + i*1024}')
            for i in range(T):
                a(f'ds_read_b128 v[{vreg(dst,i)}:{vreg(dst,i)+3}], v{VT2} offset:{k*2*tile_bytes + tile_bytes + i*1024}')
        nrb = min(NS, 2)
        for k in range(min(nrb - 1, NL)):
            readback(k)
        for k in range(NL):
            if nrb > 1 and k + 1 < NL:
                readback(k + 1)
                a(f's_waitcnt lgkmcnt({2*T})')
            else:
                if nrb == 1:
                    readback(k)
                a('s_waitcnt lgkmcnt(0)')
            tile(NBUF + (k % NS), 'stash')
        exp = []
        for b in range(NBUF):
            exp += [('A', b)] + [('K', b)] * T + [('V', b)] * T
        assert Q == exp, Q
    RPW = 256 // NW
    NWO = RPW // 8
    WO = BUF + NBUF * 8 * T
    a(f'v_lshrrev_b32 v{VT2}, 4, v{VL}')
    a(f'v_bfe_u32 v{VT3}, v{VL}, 3, 1')
    a(f'v_lshl_add_u32 v{VT0}, v{VT2}, 1, v{VT3}')
    a(f'v_mul_u32_u24 v{VT0}, 1152, v{VT0}')
    a(f'v_and_b32 v{VT1}, 7, v{VL}')
    a(f'v_lshl_add_u32 v{VT0}, v{VT1}, 4, v{VT0}')
    a('s_sub_u32 s27, s20, 1')
    a('s_and_b32 s25, s2, 15')
    a(f's_mul_i32 s28, s21, {NW}')
    a('s_add_u32 s28, s28, s27')
    a(f's_mul_i32 s28, s28, {RPW*1152}')
    a('s_lshl_b32 s29, s25, 7')
    a('s_add_u32 s28, s28, s29')
    a('s_cmp_lt_u32 s25, 9')
    a('s_cselect_b32 s28, s28, 0x10000000')
    for i in range(NWO):
        a(f'buffer_load_dwordx4 v[{WO+4*i}:{WO+4*i+3}], v{VT0}, s[56:59], s28 offen {wnt}')
        a('s_add_u32 s28, s28, 9216')
    if n1:
        a(f's_mov_b32 s46, {n1}')
        a.label('L_sloop')
        for b in range(NBUF):
            tile(b, 'sloop')
        a('s_sub_u32 s46, s46, 1')
        a('s_cmp_lg_u32 s46, 0')
        a('s_cbranch_scc1 L_sloop')
    a.label('L_loop')
    for b in range(NBUF):
        tile(b, 'loop')
    a('s_branch L_loop')
    a.label('L_exit')
    if notail:
        a('s_waitcnt vmcnt(0)')
        a('s_memrealtime s[74:75]')
        a('s_waitcnt lgkmcnt(0)')
        a('s_sub_u32 s27, s20, 1')
        a('s_lshl_b32 s76, s2, 4')
        a('s_add_u32 s76, s76, s27')
        a('s_lshl_b32 s76, s76, 5')
        a('s_add_u32 s76, s76, 0x800000')
        a('s_getreg_b32 s77, hwreg(HW_REG_XCC_ID)')
        a(f'v_mov_b32 v{S0}, s70')
        a(f'v_mov_b32 v{S0+1}, s72')
        a(f'v_mov_b32 v{S0+2}, s74')
        a(f'v_mov_b32 v{S0+3}, s77')
        a(f'buffer_store_dwordx4 v[{S0}:{S0+3}], v{VAO}, s[40:43], s76 offen')
        a('s_lshl_b32 s76, s2, 4')
        a('s_add_u32 s76, s76, 14')
        a('s_lshl_b32 s76, s76, 5')
        a('s_add_u32 s76, s76, 0x800000')
        a(f'buffer_store_dwordx4 v[{S0}:{S0+3}], v{VAO}, s[40:43], s76 offen')
        a(f'v_mov_b32 v{S0+1}, s74')
        a(f'buffer_store_dwordx4 v[{S0}:{S0+3}], v{VAO}, s[40:43], s76 offen offset:16')
        a('s_endpgm')
    if noq:
        a('s_barrier')
    a('s_waitcnt vmcnt(0)')
    if stamp:
        a('s_memrealtime s[74:75]')
    a(f'v_mov_b32 v{VT0}, v{VLS}')
    a(f'v_permlane16_swap_b32 v{VLS}, v{VT0}')
    a(f'v_add_f32 v{VLS}, v{VLS}, v{VT0}')
    a(f'v_mov_b32 v{VT0}, v{VLS}')
    a(f'v_permlane32_swap_b32 v{VLS}, v{VT0}')
    a(f'v_add_f32 v{VLS}, v{VLS}, v{VT0}')
    a('s_mul_i32 s29, s27, 1536')
    a(f'v_add_u32 v{VT0}, s29, v{VOFF}')
    a(f'v_lshlrev_b32 v{VT1}, 3, v{VL}')
    a(f'v_add_u32 v{VAL}, s29, v{VT1}')
    a(f'ds_write_b128 v{VT0}, v[{ACC}:{ACC+3}] offset:{L_P}')
    a(f'ds_write_b64 v{VAL}, v[{VM}:{VLS}] offset:{L_P+1024}')
    def sstamp():
        if stamp:
            a('s_waitcnt lgkmcnt(0)')
            a('s_lshl_b32 s76, s2, 4')
            a('s_add_u32 s76, s76, s27')
            a('s_lshl_b32 s76, s76, 5')
            a('s_add_u32 s76, s76, 0x800000')
            a('s_getreg_b32 s77, hwreg(HW_REG_XCC_ID)')
            a(f'v_mov_b32 v{S0}, s70')
            a(f'v_mov_b32 v{S0+1}, s72')
            a(f'v_mov_b32 v{S0+2}, s74')
            a(f'v_mov_b32 v{S0+3}, s77')
            a(f'buffer_store_dwordx4 v[{S0}:{S0+3}], v{VAO}, s[40:43], s76 offen')
    a(f'v_lshlrev_b32 v{VT3}, 9, v{VT3}')
    a(f'v_lshl_add_u32 v{VT2}, v{VT2}, 2, v{VT3}')
    a(f's_mul_i32 s29, s27, {RPW*2}')
    a(f'v_add_u32 v{VT2}, s29, v{VT2}')
    a('s_lshl_b32 s29, s27, 10')
    a(f'v_add_u32 v{VT0}, s29, v{VOFF}')
    a('s_mov_b32 s94, 0x01000100')
    a('s_mov_b32 s95, 0x03020302')
    a(f'v_cmp_gt_u32 s[92:93], 32, v{VL}')
    a('s_waitcnt lgkmcnt(0)')
    a('s_barrier')
    a('s_cmp_lt_u32 s25, 9')
    a('s_cbranch_scc1 L_work')
    sstamp()
    a('s_endpgm')
    a.label('L_work')
    a('s_barrier')
    PP = BUF
    D1 = 56
    for i in range(NWO):
        a(f'ds_read_b32 v{PP+i}, v{VT2} offset:{L_O+16*i}')
    a('s_waitcnt lgkmcnt(0)')
    for i in range(NWO):
        for rs, D in ((0, ACC), (1, D1)):
            bb = BB if rs == 0 else BB2
            tmp = QB + 2 + rs
            a(f'v_perm_b32 v{tmp}, v{PP+i}, v{PP+i}, s{94+rs}')
            for j in range(4):
                a(f'v_and_b32 v{bb+j}, v{tmp}, v{MK+j}')
            c = '0' if i == 0 else f'v[{D}:{D+3}]'
            a(f'v_mfma_f32_16x16x32_bf16 v[{D}:{D+3}], v[{WO+4*i}:{WO+4*i+3}], v[{bb}:{bb+3}], {c}')
    for r in range(4):
        a(f'v_cndmask_b32 v{ACC+r}, v{D1+r}, v{ACC+r}, s[92:93]')
    a(f'ds_write_b128 v{VT0}, v[{ACC}:{ACC+3}] offset:{L_P}')
    sstamp()
    a('s_waitcnt lgkmcnt(0)')
    a('s_barrier')
    a('s_endpgm')

    a.label('L_helper')
    if notail:
        a('s_endpgm')
    if prio:
        a('s_setprio 3')
    HB = 64
    XB = 136
    SNP = 32
    OLD = 52
    D0, D1 = 20, 56
    VQC, VQP, VEXP = 24, 25, 30
    a(f'v_lshrrev_b32 v{VT2}, 4, v{VL}')
    a(f'v_bfe_u32 v{VAL}, v{VL}, 3, 1')
    a(f'v_and_b32 v{VT3}, 7, v{VL}')
    a(f'v_lshl_add_u32 v{VT0}, v{VT2}, 1, v{VAL}')
    a(f'v_lshlrev_b32 v{VT0}, 13, v{VT0}')
    a(f'v_lshl_add_u32 v{VT0}, v{VT3}, 4, v{VT0}')
    a(f'v_mul_u32_u24 v{VT1}, 1152, v{VAL}')
    a(f'v_lshl_add_u32 v{VT1}, v{VT2}, 2, v{VT1}')
    a(f'v_lshlrev_b32 v{VQP}, 10, v{VAL}')
    a(f'v_lshl_add_u32 v{VQP}, v{VT2}, 7, v{VQP}')
    a(f'v_lshl_add_u32 v{VQP}, v{VT3}, 4, v{VQP}')
    a(f'v_mov_b32 v{VMT}, 0x{OOB:x}')
    a(f'v_cmp_gt_u32 vcc, 32, v{VL}')
    a(f'v_cndmask_b32 v{VQP}, v{VMT}, v{VQP}, vcc')
    a('s_and_b32 s25, s2, 15')
    a('s_and_b32 s26, s2, 3')
    a('s_bfe_u32 s27, s2, 0x20002')
    a('s_mul_i32 s28, s27, 144')
    a('s_lshl_b32 s29, s28, 13')
    a('s_lshl_b32 s31, s21, 9')
    a('s_add_u32 s29, s29, s31')
    a('s_lshl_b32 s31, s26, 7')
    a('s_add_u32 s29, s29, s31')
    a('s_lshl_b32 s28, s28, 1')
    a('s_lshl_b32 s91, s21, 13')
    a('s_lshl_b32 s92, s27, 11')
    a('s_add_u32 s92, s92, s91')
    a('s_lshl_b32 s31, s26, 8')
    a('s_add_u32 s92, s92, s31')
    a('s_lshl_b32 s31, s22, 10')
    a('s_add_u32 s91, s91, s31')
    a('s_add_u32 s93, s91, 4096')
    a('s_waitcnt lgkmcnt(0)')
    srd(a, 52, 10, 576 * 8192)
    srd(a, 40, 18, WS_BYTES)
    srd(a, 48, 4, 2304)
    def qload():
        for t in range(4):
            a(f'buffer_load_dwordx4 v[{SNP+4*t}:{SNP+4*t+3}], v{VOFF}, s[40:43], s{91 if t < 2 else 93} offen offset:{QP_OFF + 2048*(t&1)} sc1')
    qload()
    a(f'buffer_load_dwordx4 v[{OLD}:{OLD+3}], v{VQP}, s[40:43], s92 offen offset:{QP_OFF} sc1')
    for i in range(18):
        a(f'buffer_load_dword v{XB+i}, v{VT1}, s[48:51], s28 offen offset:{16*i}')
    for i in range(18):
        r = HB + i * 4
        a(f'buffer_load_dwordx4 v[{r}:{r+3}], v{VT0}, s[52:55], s29 offen {wnt}')
        a('s_add_u32 s29, s29, 0x10000')
    if b0 == 1:
        a('s_barrier')
    srd(a, 60, 14, 2304)
    srd(a, 64, 16, 256)
    for r in range(4):
        a(f'v_mov_b32 v{QA+r}, -1')
    a(f'v_lshlrev_b32 v{VMT}, 3, v{VL}')
    a('s_lshl_b32 s46, s2, 11')
    a(f's_add_u32 s46, s46, {AP_OFF}')
    a('s_lshl_b32 s47, s25, 13')
    a('s_lshl_b32 s31, s21, 9')
    a('s_add_u32 s47, s47, s31')
    a(f's_add_u32 s47, s47, {OP_OFF}')
    a('s_cmp_lt_u32 s25, 9')
    a(f's_cselect_b32 s47, s47, 0x{OOB:x}')
    VO32 = 3
    a(f'v_mov_b32 v{VO32}, 0x{OOB:x}')
    a(f'v_cmp_gt_u32 vcc, 32, v{VL}')
    a(f'v_cndmask_b32 v{VO32}, v{VO32}, v{VOFF}, vcc')
    a(f'buffer_store_dwordx4 v[{QA}:{QA+3}], v{VOFF}, s[40:43], s46 offen sc1')
    VMLS = 61
    a(f'v_and_b32 v{VMLS}, 0x37, v{VL}')
    a(f'v_cmp_eq_u32 vcc, 0, v{VMLS}')
    a(f'v_mov_b32 v{VMLS}, 0x{OOB:x}')
    a(f'v_cndmask_b32 v{VMLS}, v{VMLS}, v{VL}, vcc')
    a(f'buffer_store_dwordx2 v[{QA}:{QA+1}], v{VMLS}, s[40:43], s46 offen offset:1024 sc1')
    a(f'buffer_store_dwordx4 v[{QA}:{QA+3}], v{VO32}, s[40:43], s47 offen sc1')
    a(f'v_mov_b32 v{QB}, {tot_static*WPP}')
    a(f'v_mov_b32 v{QB+1}, 0x{OOB:x}')
    a('s_cmp_eq_u32 s23, 0' if not noq else 's_cmp_eq_u32 s23, 99')
    a('s_cselect_b64 vcc, -1, 0')
    a(f'v_cndmask_b32 v{QB+1}, v{QB+1}, v{VAO}, vcc')
    a(f'buffer_store_dword v{QB}, v{QB+1}, s[40:43], s44 offen sc1')
    if b0 == 2:
        a('s_barrier')
    a('s_mov_b32 s94, 0x01000100')
    a('s_mov_b32 s95, 0x03020302')
    a('s_waitcnt vmcnt(40)')
    def packbits(dst):
        a(f'v_lshlrev_b32 v{dst}, 31, v{SNP}')
        for i in range(1, 16):
            a(f'v_alignbit_b32 v{dst}, v{SNP+i}, v{dst}, 1')
    packbits(VEXP)
    for r in range(4):
        a(f'v_not_b32 v{OLD+r}, v{OLD+r}')
    if b0 == 3:
        a('s_waitcnt vmcnt(4)')
        a('s_barrier')
    for i in range(18):
        if i == 0:
            a('s_waitcnt vmcnt(22)')
        for rs in (0, 1):
            bb = BB if rs == 0 else BB2
            tmp = QB + 2 + rs
            a(f'v_perm_b32 v{tmp}, v{XB+i}, v{XB+i}, s{94+rs}')
            for j in range(4):
                a(f'v_and_b32 v{bb+j}, v{tmp}, v{MK+j}')
        a(f's_waitcnt vmcnt({4 + 17 - i})')
        if i == 17 and stamp:
            a('s_memrealtime s[96:97]')
        for rs, D in ((0, D0), (1, D1)):
            bb = BB if rs == 0 else BB2
            r = HB + i * 4
            c = '0' if i == 0 else f'v[{D}:{D+3}]'
            a(f'v_mfma_f32_16x16x32_bf16 v[{D}:{D+3}], v[{r}:{r+3}], v[{bb}:{bb+3}], {c}')
    for r in range(4):
        a(f'v_permlane32_swap_b32 v{D1+r}, v{D0+r}')
    for r in range(4):
        a(f'v_mov_b32 v{SNP+r}, v{D1+r}')
    for r in range(4):
        a(f'v_permlane32_swap_b32 v{SNP+r}, v{D1+r}')
    for r in range(4):
        a(f'v_add_f32 v{D0+r}, v{D0+r}, v{D1+r}')
    for r in range(4):
        a(f'v_bfi_b32 v{D0+r}, 1, v{OLD+r}, v{D0+r}')
    a(f'v_lshlrev_b32 v{VQC}, 7, v{VT2}')
    a(f'v_lshl_add_u32 v{VQC}, v{VAL}, 6, v{VQC}')
    a(f'v_lshl_add_u32 v{VQC}, v{VT3}, 1, v{VQC}')
    a(f'v_mov_b32 v{QB}, 1')
    a('s_lshl_b32 s28, s21, 4')
    a('s_mov_b32 s31, 0x400000')
    a('s_waitcnt vmcnt(0)')
    a(f'buffer_store_dwordx4 v[{D0}:{D0+3}], v{VQP}, s[40:43], s92 offen offset:{QP_OFF} sc1')
    if stamp:
        a('s_memrealtime s[72:73]')
    qload()
    a('s_waitcnt vmcnt(4)')
    a(f'buffer_atomic_add v{QB}, v{VAO}, s[64:67], s28 offen sc1')
    a('s_mov_b32 s29, 0')
    a('s_waitcnt vmcnt(1)')
    a('s_branch L_qcheck')
    a.label('L_qpoll')
    a('s_and_b32 s26, s31, 3')
    a('s_cmp_lg_u32 s26, 0')
    a('s_cbranch_scc1 L_qnocnt')
    a(f'buffer_load_dword v{QB+1}, v{VAO}, s[64:67], s28 offen sc1')
    a('s_waitcnt vmcnt(0)')
    a(f'v_readfirstlane_b32 s29, v{QB+1}')
    a.label('L_qnocnt')
    qload()
    a('s_waitcnt vmcnt(0)')
    a('s_cmp_ge_u32 s29, 16')
    a('s_cbranch_scc1 L_qgo')
    a.label('L_qcheck')
    packbits(VT1)
    a(f'v_xor_b32 v{VT1}, v{VT1}, v{VEXP}')
    a(f'v_lshrrev_b32 v{VT1}, 16, v{VT1}')
    a(f'v_cmp_ne_u32 vcc, 0xffff, v{VT1}')
    a('s_sub_u32 s31, s31, 1')
    a('s_cbranch_scc1 L_qgo')
    a('s_cmp_lg_u64 vcc, 0')
    a('s_cbranch_scc1 L_qpoll')
    a.label('L_qgo')
    if stamp:
        a('s_memrealtime s[74:75]')
    for r in range(4):
        a(f'v_add_f32 v{SNP+r}, v{SNP+r}, v{SNP+4+r}')
        a(f'v_add_f32 v{SNP+8+r}, v{SNP+8+r}, v{SNP+12+r}')
    for r in range(4):
        a(f'v_add_f32 v{SNP+r}, v{SNP+r}, v{SNP+8+r}')
    a(f'v_cvt_pk_bf16_f32 v{SNP}, v{SNP}, v{SNP+1}')
    a(f'v_cvt_pk_bf16_f32 v{SNP+2}, v{SNP+2}, v{SNP+3}')
    a(f'ds_write_b16 v{VQC}, v{SNP} offset:{L_Q}')
    a(f'ds_write_b16_d16_hi v{VQC}, v{SNP} offset:{L_Q+16}')
    a(f'ds_write_b16 v{VQC}, v{SNP+2} offset:{L_Q+32}')
    a(f'ds_write_b16_d16_hi v{VQC}, v{SNP+2} offset:{L_Q+48}')
    a('s_waitcnt lgkmcnt(0)')
    a('s_barrier')
    a('s_cmp_lg_u32 s21, s25')
    a('s_cbranch_scc1 L_nofin0')
    a('s_cmp_ge_u32 s25, 9')
    a('s_cbranch_scc1 L_nofin0')
    a(f'v_lshlrev_b32 v{VT1}, 4, v{VL}')
    a(f'v_cmp_gt_u32 vcc, 16, v{VL}')
    a(f'v_cndmask_b32 v{VT3}, 16, 0, vcc')
    a.label('L_allpoll')
    a(f'buffer_load_dword v{QB+1}, v{VT1}, s[64:67], 0 offen sc1')
    a('s_waitcnt vmcnt(0)')
    a(f'v_add_u32 v{QB+1}, v{QB+1}, v{VT3}')
    a(f'v_cmp_gt_u32 vcc, 16, v{QB+1}')
    a('s_sub_u32 s31, s31, 1')
    a('s_cbranch_scc1 L_nofin0')
    a('s_sleep 8')
    a('s_cmp_lg_u64 vcc, 0')
    a('s_cbranch_scc1 L_allpoll')
    a.label('L_nofin0')
    a('s_lshl_b32 s27, s21, 15')
    a(f's_add_u32 s27, s27, {AP_OFF}')
    for i in range(8):
        a(f's_add_u32 s{80+i}, s27, {4096*i}')
    a(f'v_lshlrev_b32 v{VNMC}, 3, v{VAL}')
    a(f'v_lshlrev_b32 v{VT0}, 8, v{VAL}')
    a(f'v_lshl_add_u32 v{VT0}, v{VT2}, 6, v{VT0}')
    a(f'v_and_b32 v{VT3}, 7, v{VL}')
    a(f'v_lshl_add_u32 v{VT0}, v{VT3}, 1, v{VT0}')
    a(f'v_mov_b32 v{VDUM}, 0xfffffffe')
    a('s_barrier')
    if stamp:
        a('s_memrealtime s[76:77]')
    RB = 64
    for w in range(NW):
        a(f'ds_read_b128 v[{RB+4*w}:{RB+4*w+3}], v{VOFF} offset:{L_P+1536*w}')
        a(f'ds_read_b64 v[{RB+4*NW+2*w}:{RB+4*NW+2*w+1}], v{VMT} offset:{L_P+1024+1536*w}')
    a('s_waitcnt lgkmcnt(0)')
    combine(a, NW, RB, RB + 4 * NW, RB + 4 * NW + 1, VM, VLS, ACC, 's30', 2)
    for r in (ACC, ACC+1, ACC+2, ACC+3, VM, VLS):
        a(f'v_min_u32 v{r}, v{r}, v{VDUM}')
    a(f'buffer_store_dwordx4 v[{ACC}:{ACC+3}], v{VOFF}, s[40:43], s46 offen sc1')
    a(f'buffer_store_dwordx2 v[{VM}:{VLS}], v{VMLS}, s[40:43], s46 offen offset:1024 sc1')
    def hstamp(final):
        if not stamp:
            return
        if stamp == 3:
            a('s_memrealtime s[88:89]')
            a('s_waitcnt lgkmcnt(0)')
            a('s_not_b32 s90, s70')
            a(f'v_mov_b32 v{S0}, s88')
            a(f'v_mov_b32 v{S0+1}, s90')
            a(f'v_mov_b32 v{S0+2}, s76')
            a(f'v_mov_b32 v{S0+3}, s74')
            a(f'v_mov_b32 v{S0+4}, s70')
            a(f'buffer_atomic_umax v{S0}, v{VAO}, s[64:67], 0 offen offset:4 sc1')
            a(f'buffer_atomic_umax v{S0+1}, v{VAO}, s[64:67], 0 offen offset:8 sc1')
            a(f'buffer_atomic_umax v{S0+2}, v{VAO}, s[64:67], 0 offen offset:12 sc1')
            a(f'buffer_atomic_umax v{S0+3}, v{VAO}, s[64:67], 0 offen offset:20 sc1')
            a(f'buffer_atomic_umax v{S0+4}, v{VAO}, s[64:67], 0 offen offset:24 sc1')
            return
        a('s_memrealtime s[88:89]')
        a('s_waitcnt lgkmcnt(0)')
        a('s_lshl_b32 s90, s2, 4')
        a('s_add_u32 s90, s90, 14')
        a('s_lshl_b32 s90, s90, 5')
        a('s_add_u32 s90, s90, 0x800000')
        for i, sr in enumerate((70, 72, 74, 76, 78, 88)):
            a(f'v_mov_b32 v{S0+i}, s{sr}')
        a(f'v_mov_b32 v{S0+6}, {final}')
        a(f'v_mov_b32 v{S0+7}, s96')
        a(f'buffer_store_dwordx4 v[{S0}:{S0+3}], v{VAO}, s[40:43], s90 offen')
        a(f'buffer_store_dwordx4 v[{S0+4}:{S0+7}], v{VAO}, s[40:43], s90 offen offset:16')
    a('s_cmp_lt_u32 s25, 9')
    a('s_cbranch_scc1 L_hwork')
    if stamp:
        a('s_mov_b64 s[78:79], s[76:77]')
    hstamp(0)
    a('s_endpgm')
    a.label('L_hwork')
    RM = RB + 64
    CK = 32
    a('s_mov_b32 s28, 0xffff')
    a.label('L_appoll')
    for i in range(16):
        a(f's_bitcmp1_b32 s28, {i}')
        a(f's_cbranch_scc0 L_apskip{i}')
        a(f'buffer_load_dwordx4 v[{RB+4*i}:{RB+4*i+3}], v{VOFF}, s[40:43], s{80+i//2} offen offset:{2048*(i&1)} sc1')
        a(f'buffer_load_dwordx2 v[{RM+2*i}:{RM+2*i+1}], v{VNMC}, s[40:43], s{80+i//2} offen offset:{2048*(i&1)+1024} sc1')
        a.label(f'L_apskip{i}')
    a('s_waitcnt vmcnt(0)')
    for i in range(16):
        a(f'v_max3_u32 v{CK+i}, v{RB+4*i}, v{RB+4*i+1}, v{RB+4*i+2}')
    for i in range(16):
        a(f'v_max3_u32 v{CK+i}, v{RB+4*i+3}, v{RM+2*i}, v{CK+i}')
    for i in range(16):
        a(f'v_max_u32 v{CK+i}, v{RM+2*i+1}, v{CK+i}')
    a(f'v_max3_u32 v{VT1}, v{CK}, v{CK+1}, v{CK+2}')
    for i in range(3, 15, 2):
        a(f'v_max3_u32 v{VT1}, v{CK+i}, v{CK+i+1}, v{VT1}')
    a(f'v_max_u32 v{VT1}, v{CK+15}, v{VT1}')
    a(f'v_cmp_eq_u32 vcc, -1, v{VT1}')
    a('s_cmp_eq_u64 vcc, 0')
    a('s_cbranch_scc1 L_apgo')
    a('s_mov_b32 s28, 0')
    for i in range(16):
        a(f'v_cmp_eq_u32 vcc, -1, v{CK+i}')
        a('s_cmp_lg_u64 vcc, 0')
        a(f's_cselect_b32 s29, {1 << i}, 0')
        a('s_or_b32 s28, s28, s29')
    a('s_sub_u32 s31, s31, 1')
    a('s_cbranch_scc1 L_apgo')
    if slp:
        a(f's_sleep {slp}')
    a('s_branch L_appoll')
    a.label('L_apgo')
    if stamp:
        a('s_memrealtime s[78:79]')
    AC2, VM2, VLS2 = 32, 36, 37
    combine(a, 8, RB, RM, RM + 1, VM, VLS, ACC, 's30', 2)
    combine(a, 8, RB + 32, RM + 16, RM + 17, VM2, VLS2, AC2, 's30', 2)
    a(f'v_rcp_f32 v{VLS}, v{VLS}')
    a(f'v_rcp_f32 v{VLS2}, v{VLS2}')
    for r in range(4):
        a(f'v_mul_f32 v{ACC+r}, v{ACC+r}, v{VLS}')
        a(f'v_mul_f32 v{AC2+r}, v{AC2+r}, v{VLS2}')
    for bb, A in ((0, ACC), (1, AC2)):
        a(f'v_cvt_pk_bf16_f32 v{A}, v{A}, v{A+1}')
        a(f'v_cvt_pk_bf16_f32 v{A+2}, v{A+2}, v{A+3}')
    for bb, A in ((0, ACC), (1, AC2)):
        o = L_O + 512 * bb
        a(f'ds_write_b16 v{VT0}, v{A} offset:{o}')
        a(f'ds_write_b16_d16_hi v{VT0}, v{A} offset:{o+16}')
        a(f'ds_write_b16 v{VT0}, v{A+2} offset:{o+32}')
        a(f'ds_write_b16_d16_hi v{VT0}, v{A+2} offset:{o+48}')
    a('s_waitcnt lgkmcnt(0)')
    a('s_barrier')
    a('s_barrier')
    for w in range(NW):
        a(f'ds_read_b128 v[{RB+4*w}:{RB+4*w+3}], v{VOFF} offset:{L_P+1024*w}')
    a('s_waitcnt lgkmcnt(0)')
    for w in range(1, NW):
        for r in range(4):
            a(f'v_add_f32 v{RB+r}, v{RB+r}, v{RB+4*w+r}')
    def addhalves(R, Tm):
        for r in range(4):
            a(f'v_mov_b32 v{Tm+r}, v{R+r}')
        for r in range(4):
            a(f'v_permlane32_swap_b32 v{R+r}, v{Tm+r}')
        for r in range(4):
            a(f'v_add_f32 v{R+r}, v{R+r}, v{Tm+r}')
    addhalves(RB, RB + 4)
    for r in range(4):
        a(f'v_min_u32 v{RB+r}, v{RB+r}, v{VDUM}')
    a(f'buffer_store_dwordx4 v[{RB}:{RB+3}], v{VO32}, s[40:43], s47 offen sc1')
    a('s_cmp_eq_u32 s21, s25')
    a('s_cbranch_scc1 L_final')
    hstamp(0)
    a('s_endpgm')
    a.label('L_final')
    a(f'v_mul_u32_u24 v{VT1}, 1152, v{VAL}')
    a(f'v_lshl_add_u32 v{VT1}, v{VT2}, 6, v{VT1}')
    a(f'v_lshl_add_u32 v{VT1}, v{VT3}, 1, v{VT1}')
    a(f'v_mov_b32 v{VT0}, 0x{OOB:x}')
    a(f'v_cmp_gt_u32 vcc, 32, v{VL}')
    a(f'v_cndmask_b32 v{VT1}, v{VT0}, v{VT1}, vcc')
    a('s_lshl_b32 s26, s25, 7')
    a('s_lshl_b32 s27, s25, 13')
    a(f's_add_u32 s27, s27, {OP_OFF}')
    a('s_add_u32 s28, s27, 4096')
    RF = RB + 8
    a.label('L_oppoll')
    for i in range(8):
        a(f'buffer_load_dwordx4 v[{RF+4*i}:{RF+4*i+3}], v{VOFF}, s[40:43], s{27 + i//4} offen offset:{1024*(i&3)} sc1')
    a('s_waitcnt vmcnt(0)')
    anymarker(a, list(range(RF, RF + 32)), VT0, 'L_oppoll', 's31', 'L_opgo')
    a.label('L_opgo')
    for step in (4, 2, 1):
        for i in range(step):
            for r in range(4):
                a(f'v_add_f32 v{RF+4*i+r}, v{RF+4*i+r}, v{RF+4*(i+step)+r}')
    addhalves(RF, RF + 4)
    a(f'v_cvt_pk_bf16_f32 v{RF}, v{RF}, v{RF+1}')
    a(f'v_cvt_pk_bf16_f32 v{RF+2}, v{RF+2}, v{RF+3}')
    a(f'buffer_store_short v{RF}, v{VT1}, s[60:63], s26 offen')
    a(f'buffer_store_short_d16_hi v{RF}, v{VT1}, s[60:63], s26 offen offset:16')
    a(f'buffer_store_short v{RF+2}, v{VT1}, s[60:63], s26 offen offset:32')
    a(f'buffer_store_short_d16_hi v{RF+2}, v{VT1}, s[60:63], s26 offen offset:48')
    hstamp(1)
    a.label('L_done')
    a('s_endpgm')
    nv = (a.maxv + 1 + 7) // 8 * 8
    s = HEADER
    if noq:
        s += f'; cntinit={tot_static*WPP}\n'
    s += f'; @launch grid=(256,1,1) block=({64*(NW+1)},1,1) lds={lds_bytes}\n'
    s += '.amdgcn_target "amdgcn-amd-amdhsa--gfx950"\n.text\n'
    s += a.text()
    s += f""".section .rodata,"a"
.p2align 6
.amdhsa_kernel {kn}
  .amdhsa_next_free_vgpr {nv}
  .amdhsa_next_free_sgpr 100
  .amdhsa_accum_offset {nv}
  .amdhsa_group_segment_fixed_size 0
  .amdhsa_kernarg_size 64
  .amdhsa_user_sgpr_count 2
  .amdhsa_user_sgpr_kernarg_segment_ptr 1
  .amdhsa_system_sgpr_workgroup_id_x 1
.end_amdhsa_kernel
"""
    return s

if __name__ == '__main__':
    ap = argparse.ArgumentParser()
    ap.add_argument('--T', type=int, default=4)
    ap.add_argument('--NBUF', type=int, default=2)
    ap.add_argument('--NW', type=int, default=4)
    ap.add_argument('--nreg', type=int, default=1)
    ap.add_argument('--ch', type=int, default=1)
    ap.add_argument('--cache', default='nt')
    ap.add_argument('--rot', type=int, default=0)
    ap.add_argument('--stamp', type=int, default=0)
    ap.add_argument('--b0', type=int, default=0)
    ap.add_argument('--prio', type=int, default=1)
    ap.add_argument('--pf', type=int, default=0)
    ap.add_argument('--NS', type=int, default=0)
    ap.add_argument('--noq', type=int, default=0)
    ap.add_argument('--static', type=int, default=0)
    ap.add_argument('--slp', type=int, default=0)
    ap.add_argument('--nocomp', type=int, default=0)
    ap.add_argument('--notail', type=int, default=0)
    ap.add_argument('--NL', type=int, default=0)
    ap.add_argument('--wnt', default='nt')
    ap.add_argument('--burst', type=int, default=0)
    ap.add_argument('--fs', type=int, default=0)
    ap.add_argument('-o', default=f'cdna_kernels/{NAME}.s')
    args = ap.parse_args()
    open(args.o, 'w').write(gen(args.T, args.NBUF, args.NW, args.nreg, args.ch, args.cache, args.rot, args.stamp, args.b0, args.prio, args.pf, args.NS, args.noq, args.static, args.slp, args.nocomp, args.notail, args.NL, args.wnt, args.burst, args.fs))
```

```python
import sys, struct, argparse
sys.path.insert(0, 'tools')
from asmlib import Asm

NAME = 'standalone__gqa_block_cached__decode'
CSCALE = (128 ** -0.5) * 1.4426950408889634
def f32bits(x): return struct.unpack('<I', struct.pack('<f', x))[0]

QP_OFF = 0
AP_OFF = 1 << 20
OP_OFF = 2 << 20
CNT_OFF = 3 << 20
WS_BYTES = 1 << 30
OOB = 0x40000000

HEADER = """; Kernarg layout for this problem (64 bytes, ptrs only, base s[0:1]):
;   offset  16: d_in[2] v_cache  shape=(2, 16, 32768, 128) dtype=bfloat16
"""

def srd(a, d, lo, nbytes):
    a(f's_mov_b32 s{d}, s{lo}')
    a(f's_and_b32 s{d+1}, s{lo+1}, 0xffff')
    a(f's_mov_b32 s{d+2}, 0x{nbytes:x}')
    a(f's_mov_b32 s{d+3}, 0x00020000')

def masks(a, vl, vm, vt0, vt1):
    a(f'v_and_b32 v{vt0}, 1, v{vl}')
    a(f'v_lshlrev_b32 v{vt0}, 4, v{vt0}')
    a(f'v_mov_b32 v{vt1}, 0xffff')
    a(f'v_lshlrev_b32 v{vt0}, v{vt0}, v{vt1}')
    a(f'v_bfe_u32 v{vt1}, v{vl}, 1, 2')
    for j in range(4):
        a(f'v_cmp_eq_u32 vcc, {j}, v{vt1}')
        a(f'v_cndmask_b32 v{vm+j}, 0, v{vt0}, vcc')

def combine(a, n, RO, RM, RL, VM, VLS, ACC, sc, mstride=1):
    M = lambda i: RM + i * mstride
    L = lambda i: RL + i * mstride
    a(f'v_max_f32 v{VM}, v{M(0)}, v{M(1)}')
    for i in range(2, n, 2):
        a(f'v_max3_f32 v{VM}, v{M(i)}, v{M(i+1)}, v{VM}')
    for i in range(n):
        a(f'v_sub_f32 v{M(i)}, v{M(i)}, v{VM}')
    for i in range(n):
        a(f'v_mul_f32 v{M(i)}, {sc}, v{M(i)}')
    for i in range(n):
        a(f'v_exp_f32 v{M(i)}, v{M(i)}')
    a(f'v_mul_f32 v{VLS}, v{M(0)}, v{L(0)}')
    for r in range(4):
        a(f'v_mul_f32 v{ACC+r}, v{M(0)}, v{RO+r}')
    for i in range(1, n):
        a(f'v_fmac_f32 v{VLS}, v{M(i)}, v{L(i)}')
        for r in range(4):
            a(f'v_fmac_f32 v{ACC+r}, v{M(i)}, v{RO+4*i+r}')

def anymarker(a, regs, vt, label_retry, scnt, label_giveup):
    a(f'v_max_u32 v{vt}, v{regs[0]}, v{regs[1]}')
    for i in range(2, len(regs) - 1, 2):
        a(f'v_max3_u32 v{vt}, v{regs[i]}, v{regs[i+1]}, v{vt}')
    if len(regs) % 2:
        a(f'v_max_u32 v{vt}, v{regs[-1]}, v{vt}')
    a(f'v_cmp_eq_u32 vcc, -1, v{vt}')
    a(f's_sub_u32 {scnt}, {scnt}, 1')
    a(f's_cbranch_scc1 {label_giveup}')
    a('s_cmp_lg_u64 vcc, 0')
    a(f's_cbranch_scc1 {label_retry}')

def gen(T=4, NBUF=2, NW=4, nreg=1, ch=1, cache='nt', rot=0, stamp=0, b0=0, prio=1, pf=0, NS=0, noq=0, static=0, slp=0, nocomp=0, notail=0, NL=0, wnt='nt', burst=0, fs=0, oppipe=1, tlb=0, dly=0):
    a = Asm()
    kn = NAME + '_kernel'
    a.raw(f'.globl {kn}\n.p2align 8\n.type {kn},@function\n{kn}:')
    NTP = 32768 // (4 * T)
    tile_bytes = T * 1024
    tsh = tile_bytes.bit_length() - 1
    WPP = 8 * NW
    BUF = 64
    base_static = 2 * NBUF + NS + NL
    first_static = 1 if (NS and fs >= base_static + NBUF) else 0
    n1 = max(0, (fs - base_static - first_static * NBUF) // NBUF)
    tot_static = base_static + (first_static + n1) * NBUF
    def kreg(buf, i): return BUF + buf * 8 * T + 4 * i
    def vreg(buf, i): return BUF + buf * 8 * T + 4 * T + 4 * i
    VL, VOFF = 1, 2
    nvo = (T + 3) // 4
    assert nvo <= 2
    QA, QB, MK, ACC = 8, 12, 16, 20
    VM, VLS, VMT, VT0, VT1, VAL, VNMC = 24, 25, 26, 27, 28, 29, 30
    VAO = 31
    S0, SN = 32, 40
    BB, BB2 = 4, 48
    VA = 52
    VDUM = 60
    VT2, VT3 = 62, 63
    assert T <= 8 and NBUF <= 8
    SOFF = 80
    L_Q = 0
    L_O = 512
    L_P = 2048
    assert NW == 4
    L_G = L_P + NW * 1536
    L_S = (L_G + 4 * 1056 + 1023) // 1024 * 1024
    lds_bytes = L_S + NW * NL * 2 * tile_bytes
    assert lds_bytes <= 160 * 1024
    assert NL == 0 or (T == 4 and NS >= 1)
    a('s_cmp_ge_u32 s2, 256')
    a('s_cbranch_scc1 L_done')
    if stamp:
        a('s_memrealtime s[70:71]')
    a('s_load_dwordx16 s[4:19], s[0:1], 0')
    a(f'v_and_b32 v{VL}, 63, v0')
    a(f'v_lshrrev_b32 v{VT0}, 6, v0')
    a(f'v_lshlrev_b32 v{VOFF}, 4, v{VL}')
    for j in range(1, nvo):
        a(f'v_add_u32 v{VOFF+j}, {4096*j}, v{VOFF}')
    a(f'v_readfirstlane_b32 s20, v{VT0}')
    a(f'v_mov_b32 v{VAO}, 0x{OOB:x}')
    a(f'v_cmp_eq_u32 vcc, 0, v{VL}')
    a(f'v_cndmask_b32 v{VAO}, v{VAO}, 0, vcc')
    a('s_lshr_b32 s21, s2, 4')
    a('s_bfe_u32 s22, s2, 0x10003')
    a('s_and_b32 s23, s2, 7')
    a('s_lshl_b32 s24, s22, 4')
    a('s_add_u32 s24, s24, s21')
    a('s_lshl_b32 s44, s24, 8')
    a(f's_add_u32 s44, s44, {CNT_OFF}')
    a(f's_mul_i32 s45, s24, {rot}')
    a('s_lshl_b32 s24, s24, 23')
    a(f's_mov_b32 s30, 0x{f32bits(CSCALE):x}')
    masks(a, VL, MK, VT0, VT1)
    a('s_cmp_eq_u32 s20, 0')
    a('s_cbranch_scc1 L_helper')

    lr, lc = nreg.bit_length() - 1, ch.bit_length() - 1
    ln = NTP.bit_length() - 1
    def tick2off(st, sd):
        a(f's_add_u32 s29, {st}, s45')
        a(f's_and_b32 s29, s29, {NTP-1}')
        if nreg > 1:
            a(f's_bfe_u32 s31, s29, 0x{(lr << 16) | lc:x}')
            a(f's_lshl_b32 s31, s31, {ln-lr}')
            a(f's_lshr_b32 s28, s29, {lr+lc}')
            a(f's_lshl_b32 s28, s28, {lc}')
            a(f's_or_b32 s31, s31, s28')
            a(f's_and_b32 s29, s29, {ch-1}')
            a(f's_or_b32 s29, s29, s31')
        a(f's_lshl_b32 s29, s29, {tsh}')
        a('s_add_u32 s29, s29, s24')
        a(f's_cmp_lt_u32 {st}, {NTP}')
        a(f's_cselect_b32 {sd}, s29, 0x10000000')
    a(f's_mul_i32 s25, s23, {NW}')
    a('s_add_u32 s25, s25, s20')
    a('s_sub_u32 s25, s25, 1')
    assert NBUF + NS + NL <= 12
    for b in range(NBUF + NS + NL):
        a(f's_add_u32 s26, s25, {b*WPP}')
        tick2off('s26', f's{SOFF+b}')
    for b in range(NBUF):
        a(f's_add_u32 s26, s25, {(NBUF+NS+NL+b)*WPP}')
        a(f'v_mov_b32 v{VA+b}, s26')
    if NL:
        a('s_sub_u32 s27, s20, 1')
        a(f's_mul_i32 s47, s27, {NL*2*tile_bytes}')
        a(f's_add_u32 s47, s47, {L_S}')
        a(f'v_add_u32 v{VT2}, s47, v{VOFF}')
    a(f'v_and_b32 v{VT0}, 15, v{VL}')
    a(f'v_lshlrev_b32 v{VT0}, 4, v{VT0}')
    a(f'v_bfe_u32 v{VT1}, v{VL}, 3, 1')
    a(f'v_lshl_add_u32 v{VT0}, v{VT1}, 8, v{VT0}')
    a(f'v_xor_b32 v{VT1}, 0x100, v{VT0}')
    a(f'v_mov_b32 v{VM}, 0xff800000')
    a(f'v_mov_b32 v{VLS}, 0')
    for r in range(4):
        a(f'v_mov_b32 v{ACC+r}, 0')
    a(f'v_mov_b32 v{VDUM+1}, 0x{OOB:x}')
    a('s_waitcnt lgkmcnt(0)')
    srd(a, 32, 6, 1 << 28)
    srd(a, 36, 8, 1 << 28)
    srd(a, 40, 18, WS_BYTES)
    srd(a, 56, 12, 4096 * 1152)
    if b0:
        a('s_barrier')
    Q = []
    def issueK(buf):
        for i in range(T):
            a(f'buffer_load_dwordx4 v[{kreg(buf,i)}:{kreg(buf,i)+3}], v{VOFF+i//4}, s[32:35], s{SOFF+buf} offen offset:{(i%4)*1024} {cache}')
            Q.append(('K', buf))
    def issueV(buf):
        for i in range(T):
            a(f'buffer_load_dwordx4 v[{vreg(buf,i)}:{vreg(buf,i)+3}], v{VOFF+i//4}, s[36:39], s{SOFF+buf} offen offset:{(i%4)*1024} {cache}')
            Q.append(('V', buf))
    def waitfor(tag):
        idx = max(i for i, t in enumerate(Q) if t == tag)
        n = len(Q) - 1 - idx
        a(f's_waitcnt vmcnt({min(n, 63)})')
        del Q[:idx + 1]
        return n
    for b in range(NBUF + NS):
        if pf and b >= pf:
            waitfor(('V', b - pf))
        if b < NBUF:
            a(f'buffer_load_dword v{VDUM}, v{VDUM+1}, s[40:43], 0 offen')
            Q.append(('A', b))
        issueK(b); issueV(b)
        assert len(Q) <= 63
    for k in range(NL):
        b = NBUF + NS + k
        if pf and b >= pf:
            waitfor(('V', b - pf))
        for tag, sr, off in (('K', 32, 0), ('V', 36, tile_bytes)):
            a(f's_add_u32 m0, s47, {k*2*tile_bytes + off}')
            a('s_nop 0')
            for i in range(T):
                a(f'buffer_load_dwordx4 v{VOFF}, s[{sr}:{sr+3}], s{SOFF+b} offen offset:{i*1024} {cache} lds')
                Q.append((tag, b))
        assert len(Q) <= 63
    if not noq:
        a('s_barrier')
    a(f'ds_read_b128 v[{QA}:{QA+3}], v{VT0} offset:{L_Q}')
    a(f'ds_read_b128 v[{QB}:{QB+3}], v{VT1} offset:{L_Q}')
    if stamp:
        a('s_memrealtime s[72:73]')
    a('s_waitcnt lgkmcnt(0)')
    w1 = T + (NBUF - 1) * (2 * T + 1)
    w2 = (NBUF - 1) * (2 * T + 1) + T + 1
    if burst:
        w2 = (NBUF - 1) * (2 * T + 1)
    assert w2 <= 63
    a_real = a
    def tile(buf, mode):
        refill = mode != 'stash'
        a0 = a_real
        def a(t):
            op = t.split()[0]
            if nocomp & 1 and op.startswith('v_dot2'): return
            if nocomp & 2 and op.startswith('v_') and not op.startswith('v_dot2') and not op.startswith('v_mfma') and 'readfirstlane' not in op and f'v{VA+buf},' not in t: return
            if nocomp & 4 and op.startswith('v_mfma'): return
            a0(t)
        st = static or mode == 'sloop' or (mode == 'first' and first_static)
        if mode == 'sloop':
            a(f's_waitcnt vmcnt({w1})')
        elif mode == 'loop':
            a(f's_cmp_ge_u32 s{SOFF+buf}, 0x10000000')
            a('s_cbranch_scc1 L_exit')
            a(f's_waitcnt vmcnt({w1})')
        elif ('K', buf) in Q:
            waitfor(('K', buf))
        if refill:
            a(f'v_readfirstlane_b32 s26, v{VA+buf}')
        for i in range(T):
            k = kreg(buf, i)
            for j in range(4):
                c = '0' if j == 0 else f'v{S0+i}'
                a(f'v_dot2_f32_bf16 v{S0+i}, v{k+j}, v{QA+j}, {c}')
                c = '0' if j == 0 else f'v{SN+i}'
                a(f'v_dot2_f32_bf16 v{SN+i}, v{k+j}, v{QB+j}, {c}')
        vpend = ('V', buf) in Q
        if vpend:
            for i, t in enumerate(Q):
                if t == ('V', buf): Q[i] = ('Vold', buf)
        def refillK():
            if st:
                a(f'v_add_u32 v{VA+buf}, {NBUF*WPP}, v{VA+buf}')
                tick2off('s26', f's{SOFF+buf}')
                a(f'buffer_load_dword v{VDUM}, v{VDUM+1}, s[40:43], 0 offen')
            else:
                a(f'v_mov_b32 v{VA+buf}, 1')
                tick2off('s26', f's{SOFF+buf}')
                if burst and NBUF == 1 and mode == 'loop':
                    a('s_cbranch_scc0 L_exit')
                a(f'buffer_atomic_add v{VA+buf}, v{VAO}, s[40:43], s44 offen sc0 sc1')
            Q.append(('A', buf))
            issueK(buf)
        if refill and not burst:
            refillK()
        for i in range(T):
            a(f'v_add_f32_dpp v{S0+i}, v{SN+i}, v{S0+i} row_ror:8 row_mask:0xf bank_mask:0xf')
        for i in range(T):
            a(f'v_add_f32_dpp v{S0+i}, v{S0+i}, v{S0+i} row_half_mirror row_mask:0xf bank_mask:0xf')
        for i in range(T):
            a(f'v_add_f32_dpp v{S0+i}, v{S0+i}, v{S0+i} quad_perm:[1,0,3,2] row_mask:0xf bank_mask:0xf')
        for i in range(T):
            a(f'v_add_f32_dpp v{S0+i}, v{S0+i}, v{S0+i} quad_perm:[2,3,0,1] row_mask:0xf bank_mask:0xf')
        a(f'v_max3_f32 v{VMT}, v{S0}, v{S0+1}, v{VM}')
        for i in range(2, T, 2):
            a(f'v_max3_f32 v{VMT}, v{S0+i}, v{S0+i+1}, v{VMT}')
        a(f'v_mov_b32 v{VT0}, v{VMT}')
        a(f'v_permlane16_swap_b32 v{VMT}, v{VT0}')
        a(f'v_max_f32 v{VMT}, v{VMT}, v{VT0}')
        a(f'v_mov_b32 v{VT0}, v{VMT}')
        a(f'v_permlane32_swap_b32 v{VMT}, v{VT0}')
        a(f'v_max_f32 v{VMT}, v{VMT}, v{VT0}')
        a(f'v_sub_f32 v{VT0}, v{VM}, v{VMT}')
        a(f'v_mul_f32 v{VT0}, s30, v{VT0}')
        a(f'v_exp_f32 v{VAL}, v{VT0}')
        a(f'v_mul_f32 v{VNMC}, s30, v{VMT}')
        a(f'v_mov_b32 v{VM}, v{VMT}')
        for i in range(T):
            a(f'v_fma_f32 v{S0+i}, v{S0+i}, s30, -v{VNMC}')
        for i in range(T):
            a(f'v_exp_f32 v{S0+i}, v{S0+i}')
        for r in range(4):
            a(f'v_mul_f32 v{ACC+r}, v{ACC+r}, v{VAL}')
        a(f'v_mul_f32 v{VLS}, v{VLS}, v{VAL}')
        for i in range(T):
            a(f'v_add_f32 v{VLS}, v{VLS}, v{S0+i}')
            a(f'v_cvt_pk_bf16_f32 v{SN+i}, v{S0+i}, v{S0+i}')
        if mode in ('loop', 'sloop'):
            a(f's_waitcnt vmcnt({w2})')
        elif vpend:
            waitfor(('Vold', buf))
        for i in range(T):
            bb = BB if i % 2 == 0 else BB2
            for j in range(4):
                a(f'v_and_b32 v{bb+j}, v{SN+i}, v{MK+j}')
            v = vreg(buf, i)
            a(f'v_mfma_f32_16x16x32_bf16 v[{ACC}:{ACC+3}], v[{v}:{v+3}], v[{bb}:{bb+3}], v[{ACC}:{ACC+3}]')
        if refill:
            if burst:
                refillK()
            issueV(buf)
    if NS:
        for b in range(NBUF):
            tile(b, 'first')
        for b in range(NBUF, NBUF + NS):
            tile(b, 'stash')
        def readback(k):
            b = NBUF + NS + k
            dst = NBUF + (k % NS)
            if ('V', b) in Q:
                waitfor(('V', b))
            for i in range(T):
                a(f'ds_read_b128 v[{kreg(dst,i)}:{kreg(dst,i)+3}], v{VT2} offset:{k*2*tile_bytes + i*1024}')
            for i in range(T):
                a(f'ds_read_b128 v[{vreg(dst,i)}:{vreg(dst,i)+3}], v{VT2} offset:{k*2*tile_bytes + tile_bytes + i*1024}')
        nrb = min(NS, 2)
        for k in range(min(nrb - 1, NL)):
            readback(k)
        for k in range(NL):
            if nrb > 1 and k + 1 < NL:
                readback(k + 1)
                a(f's_waitcnt lgkmcnt({2*T})')
            else:
                if nrb == 1:
                    readback(k)
                a('s_waitcnt lgkmcnt(0)')
            tile(NBUF + (k % NS), 'stash')
        exp = []
        for b in range(NBUF):
            exp += [('A', b)] + [('K', b)] * T + [('V', b)] * T
        assert Q == exp, Q
    RPW = 256 // NW
    NWO = RPW // 8
    WO = BUF + NBUF * 8 * T
    a(f'v_lshrrev_b32 v{VT2}, 4, v{VL}')
    a(f'v_bfe_u32 v{VT3}, v{VL}, 3, 1')
    a(f'v_lshl_add_u32 v{VT0}, v{VT2}, 1, v{VT3}')
    a(f'v_mul_u32_u24 v{VT0}, 1152, v{VT0}')
    a(f'v_and_b32 v{VT1}, 7, v{VL}')
    a(f'v_lshl_add_u32 v{VT0}, v{VT1}, 4, v{VT0}')
    a('s_sub_u32 s27, s20, 1')
    a('s_and_b32 s25, s2, 15')
    a(f's_mul_i32 s28, s21, {NW}')
    a('s_add_u32 s28, s28, s27')
    a(f's_mul_i32 s28, s28, {RPW*1152}')
    a('s_lshl_b32 s29, s25, 7')
    a('s_add_u32 s28, s28, s29')
    a('s_cmp_lt_u32 s25, 9')
    a('s_cselect_b32 s28, s28, 0x10000000')
    for i in range(NWO):
        a(f'buffer_load_dwordx4 v[{WO+4*i}:{WO+4*i+3}], v{VT0}, s[56:59], s28 offen {wnt}')
        a('s_add_u32 s28, s28, 9216')
    if n1:
        a(f's_mov_b32 s46, {n1}')
        a.label('L_sloop')
        for b in range(NBUF):
            tile(b, 'sloop')
        a('s_sub_u32 s46, s46, 1')
        a('s_cmp_lg_u32 s46, 0')
        a('s_cbranch_scc1 L_sloop')
    a.label('L_loop')
    for b in range(NBUF):
        tile(b, 'loop')
    a('s_branch L_loop')
    a.label('L_exit')
    if notail:
        a('s_waitcnt vmcnt(0)')
        a('s_memrealtime s[74:75]')
        a('s_waitcnt lgkmcnt(0)')
        a('s_sub_u32 s27, s20, 1')
        a('s_lshl_b32 s76, s2, 4')
        a('s_add_u32 s76, s76, s27')
        a('s_lshl_b32 s76, s76, 5')
        a('s_add_u32 s76, s76, 0x800000')
        a('s_getreg_b32 s77, hwreg(HW_REG_XCC_ID)')
        a(f'v_mov_b32 v{S0}, s70')
        a(f'v_mov_b32 v{S0+1}, s72')
        a(f'v_mov_b32 v{S0+2}, s74')
        a(f'v_mov_b32 v{S0+3}, s77')
        a(f'buffer_store_dwordx4 v[{S0}:{S0+3}], v{VAO}, s[40:43], s76 offen')
        a('s_lshl_b32 s76, s2, 4')
        a('s_add_u32 s76, s76, 14')
        a('s_lshl_b32 s76, s76, 5')
        a('s_add_u32 s76, s76, 0x800000')
        a(f'buffer_store_dwordx4 v[{S0}:{S0+3}], v{VAO}, s[40:43], s76 offen')
        a(f'v_mov_b32 v{S0+1}, s74')
        a(f'buffer_store_dwordx4 v[{S0}:{S0+3}], v{VAO}, s[40:43], s76 offen offset:16')
        a('s_endpgm')
    if noq:
        a('s_barrier')
    if stamp:
        a('s_memrealtime s[74:75]')
    a(f'v_mov_b32 v{VT0}, v{VLS}')
    a(f'v_permlane16_swap_b32 v{VLS}, v{VT0}')
    a(f'v_add_f32 v{VLS}, v{VLS}, v{VT0}')
    a(f'v_mov_b32 v{VT0}, v{VLS}')
    a(f'v_permlane32_swap_b32 v{VLS}, v{VT0}')
    a(f'v_add_f32 v{VLS}, v{VLS}, v{VT0}')
    PS = 1056
    a(f'v_and_b32 v{VT1}, 7, v{VL}')
    a(f'v_lshlrev_b32 v{VT1}, 2, v{VT1}')
    a(f'v_lshl_add_u32 v{VT1}, v{VT2}, 7, v{VT1}')
    a(f'v_lshl_add_u32 v{VT1}, v{VT3}, 9, v{VT1}')
    a(f's_mul_i32 s29, s27, {PS}')
    a(f'v_add_u32 v{VT1}, s29, v{VT1}')
    a(f'v_lshlrev_b32 v{VT0}, 3, v{VT3}')
    a(f'v_add_u32 v{VT0}, s29, v{VT0}')
    for r in range(4):
        a(f'ds_write_b32 v{VT1}, v{ACC+r} offset:{L_P+32*r}')
    a(f'ds_write_b64 v{VT0}, v[{VM}:{VLS}] offset:{L_P+1024}')
    def sstamp():
        if stamp:
            a('s_waitcnt lgkmcnt(0)')
            a('s_lshl_b32 s76, s2, 4')
            a('s_add_u32 s76, s76, s27')
            a('s_lshl_b32 s76, s76, 5')
            a('s_add_u32 s76, s76, 0x800000')
            a('s_getreg_b32 s77, hwreg(HW_REG_XCC_ID)')
            a(f'v_mov_b32 v{S0}, s70')
            a(f'v_mov_b32 v{S0+1}, s72')
            a(f'v_mov_b32 v{S0+2}, s74')
            a(f'v_mov_b32 v{S0+3}, s77')
            a(f'buffer_store_dwordx4 v[{S0}:{S0+3}], v{VAO}, s[40:43], s76 offen')
            if stamp == 4:
                a(f'v_mov_b32 v{S0+4}, s78')
                a(f'v_mov_b32 v{S0+5}, s88')
                a(f'v_mov_b32 v{S0+6}, s90')
                a(f'v_mov_b32 v{S0+7}, 0')
                a(f'buffer_store_dwordx4 v[{S0+4}:{S0+7}], v{VAO}, s[40:43], s76 offen offset:16')
    a('s_waitcnt lgkmcnt(0)')
    a('s_barrier')
    a('s_cmp_lt_u32 s25, 9')
    a('s_cbranch_scc1 L_work')
    if stamp == 4:
        a('s_mov_b32 s78, 0'); a('s_mov_b32 s88, 0'); a('s_mov_b32 s90, 0')
    sstamp()
    a('s_endpgm')
    a.label('L_work')
    a('s_lshl_b32 s28, s21, 15')
    a('s_lshl_b32 s29, s27, 13')
    a('s_add_u32 s28, s28, s29')
    a(f's_add_u32 s80, s28, {AP_OFF}')
    a('s_add_u32 s81, s80, 4096')
    a(f'v_lshrrev_b32 v{VAL}, 5, v{VL}')
    a(f'v_lshlrev_b32 v{VAL}, 3, v{VAL}')
    a('s_mov_b32 s31, 0x400000')
    a('s_mov_b32 s28, 0xf')
    a('s_mov_b32 s94, 0x01000100')
    a('s_mov_b32 s95, 0x03020302')
    a(f'v_cmp_gt_u32 s[92:93], 32, v{VL}')
    GB = BUF
    GM = BUF + 16
    a('s_waitcnt vmcnt(0)')
    a.label('L_appoll')
    for i in range(4):
        a(f's_bitcmp1_b32 s28, {i}')
        a(f's_cbranch_scc0 L_apskip{i}')
        a(f'buffer_load_dwordx4 v[{GB+4*i}:{GB+4*i+3}], v{VOFF}, s[40:43], s{80+i//2} offen offset:{2048*(i&1)} sc1')
        a(f'buffer_load_dwordx2 v[{GM+2*i}:{GM+2*i+1}], v{VAL}, s[40:43], s{80+i//2} offen offset:{2048*(i&1)+1024} sc1')
        a.label(f'L_apskip{i}')
    a('s_waitcnt vmcnt(0)')
    for i in range(4):
        a(f'v_max3_u32 v{S0+i}, v{GB+4*i}, v{GB+4*i+1}, v{GB+4*i+2}')
    for i in range(4):
        a(f'v_max3_u32 v{S0+i}, v{GB+4*i+3}, v{GM+2*i}, v{S0+i}')
    for i in range(4):
        a(f'v_max_u32 v{S0+i}, v{GM+2*i+1}, v{S0+i}')
    a(f'v_max3_u32 v{VT0}, v{S0}, v{S0+1}, v{S0+2}')
    a(f'v_max_u32 v{VT0}, v{S0+3}, v{VT0}')
    a(f'v_cmp_eq_u32 vcc, -1, v{VT0}')
    a('s_cmp_eq_u64 vcc, 0')
    a('s_cbranch_scc1 L_apgo')
    a('s_mov_b32 s28, 0')
    for i in range(4):
        a(f'v_cmp_eq_u32 vcc, -1, v{S0+i}')
        a('s_cmp_lg_u64 vcc, 0')
        a(f's_cselect_b32 s29, {1 << i}, 0')
        a('s_or_b32 s28, s28, s29')
    a('s_sub_u32 s31, s31, 1')
    a('s_cbranch_scc1 L_apgo')
    if slp:
        a(f's_sleep {slp}')
    a('s_branch L_appoll')
    a.label('L_apgo')
    if stamp == 4:
        a('s_memrealtime s[78:79]')
    combine(a, 4, GB, GM, GM + 1, VM, VLS, ACC, 's30', 2)
    a(f's_mul_i32 s29, s27, {PS}')
    a(f'v_add_u32 v{VT0}, s29, v{VOFF}')
    a(f'v_add_u32 v{VT1}, s29, v{VAL}')
    a(f'ds_write_b128 v{VT0}, v[{ACC}:{ACC+3}] offset:{L_G}')
    a(f'ds_write_b64 v{VT1}, v[{VM}:{VLS}] offset:{L_G+1024}')
    a(f'v_mul_u32_u24 v{VT3}, {2*PS}, v{VT3}')
    a(f'v_lshl_add_u32 v{VT2}, v{VT2}, 3, v{VT3}')
    a('s_lshl_b32 s29, s27, 8')
    a(f'v_add_u32 v{VT2}, s29, v{VT2}')
    a('s_lshr_b32 s29, s27, 1')
    a('s_lshl_b32 s29, s29, 3')
    a(f'v_add_u32 v{VT3}, s29, v{VT3}')
    a('s_lshl_b32 s29, s27, 10')
    a(f'v_add_u32 v{VT0}, s29, v{VOFF}')
    a('s_waitcnt lgkmcnt(0)')
    a('s_barrier')
    if stamp == 4:
        a('s_memrealtime s[88:89]')
    RA = BUF
    a(f'ds_read_b64 v[{S0}:{S0+1}], v{VT3} offset:{L_G+1024}')
    a(f'ds_read_b64 v[{S0+2}:{S0+3}], v{VT3} offset:{L_G+1024+PS}')
    for i in range(NWO):
        if i == 6:
            a('s_waitcnt lgkmcnt(8)')
        a(f'ds_read_b64 v[{RA+2*i}:{RA+2*i+1}], v{VT2} offset:{L_G+32*i}')
        a(f'ds_read_b64 v[{RA+16+2*i}:{RA+16+2*i+1}], v{VT2} offset:{L_G+32*i+PS}')
    a(f'v_max_f32 v{VM}, v{S0}, v{S0+2}')
    a(f'v_sub_f32 v{S0}, v{S0}, v{VM}')
    a(f'v_sub_f32 v{S0+2}, v{S0+2}, v{VM}')
    a(f'v_mul_f32 v{S0}, s30, v{S0}')
    a(f'v_mul_f32 v{S0+2}, s30, v{S0+2}')
    a(f'v_exp_f32 v{S0}, v{S0}')
    a(f'v_exp_f32 v{S0+2}, v{S0+2}')
    a(f'v_mul_f32 v{VLS}, v{S0}, v{S0+1}')
    a(f'v_fmac_f32 v{VLS}, v{S0+2}, v{S0+3}')
    a(f'v_rcp_f32 v{VLS}, v{VLS}')
    a(f'v_mul_f32 v{VMT}, v{S0}, v{VLS}')
    a(f'v_mul_f32 v{VNMC}, v{S0+2}, v{VLS}')
    a('s_waitcnt lgkmcnt(0)')
    for i in range(2 * NWO):
        a(f'v_mul_f32 v{RA+i}, v{RA+i}, v{VMT}')
    for i in range(2 * NWO):
        a(f'v_fmac_f32 v{RA+i}, v{RA+16+i}, v{VNMC}')
    PP = RA + 16
    for i in range(NWO):
        a(f'v_cvt_pk_bf16_f32 v{PP+i}, v{RA+2*i}, v{RA+2*i+1}')
    D1 = 56
    BS = [BB, BB2, S0, S0 + 4]
    def build(n):
        i, rs = n // 2, n % 2
        bb = BS[n % 4]
        tmp = QB + 2 + rs
        a(f'v_perm_b32 v{tmp}, v{PP+i}, v{PP+i}, s{94+rs}')
        for j in range(4):
            a(f'v_and_b32 v{bb+j}, v{tmp}, v{MK+j}')
    build(0)
    for n in range(2 * NWO):
        if n + 1 < 2 * NWO:
            build(n + 1)
        i, rs = n // 2, n % 2
        D = ACC if rs == 0 else D1
        bb = BS[n % 4]
        c = '0' if i == 0 else f'v[{D}:{D+3}]'
        a(f'v_mfma_f32_16x16x32_bf16 v[{D}:{D+3}], v[{WO+4*i}:{WO+4*i+3}], v[{bb}:{bb+3}], {c}')
    for r in range(4):
        a(f'v_cndmask_b32 v{ACC+r}, v{D1+r}, v{ACC+r}, s[92:93]')
    a(f'ds_write_b128 v{VT0}, v[{ACC}:{ACC+3}] offset:{L_P}')
    a('s_waitcnt lgkmcnt(0)')
    a('s_barrier')
    if stamp == 4:
        a('s_memrealtime s[90:91]')
    sstamp()
    a('s_endpgm')

    a.label('L_helper')
    if notail:
        a('s_endpgm')
    if prio:
        a('s_setprio 3')
    if dly:
        a('s_and_b32 s26, s2, 3')
        a('s_cmp_lg_u32 s26, 1')
        a('s_cbranch_scc1 L_nodly')
        for i in range(dly):
            a('s_sleep 127')
        a.label('L_nodly')
    HB = 64
    XB = 136
    SNP = 32
    OLD = 52
    D0, D1 = 20, 56
    VQC, VQP, VEXP = 24, 25, 30
    a(f'v_lshrrev_b32 v{VT2}, 4, v{VL}')
    a(f'v_bfe_u32 v{VAL}, v{VL}, 3, 1')
    a(f'v_and_b32 v{VT3}, 7, v{VL}')
    a(f'v_lshl_add_u32 v{VT0}, v{VT2}, 1, v{VAL}')
    a(f'v_lshlrev_b32 v{VT0}, 13, v{VT0}')
    a(f'v_lshl_add_u32 v{VT0}, v{VT3}, 4, v{VT0}')
    a(f'v_mul_u32_u24 v{VT1}, 1152, v{VAL}')
    a(f'v_lshl_add_u32 v{VT1}, v{VT2}, 2, v{VT1}')
    a(f'v_lshlrev_b32 v{VQP}, 10, v{VAL}')
    a(f'v_lshl_add_u32 v{VQP}, v{VT2}, 7, v{VQP}')
    a(f'v_lshl_add_u32 v{VQP}, v{VT3}, 4, v{VQP}')
    a(f'v_mov_b32 v{VMT}, 0x{OOB:x}')
    a(f'v_cmp_gt_u32 vcc, 32, v{VL}')
    a(f'v_cndmask_b32 v{VQP}, v{VMT}, v{VQP}, vcc')
    a('s_and_b32 s25, s2, 15')
    a('s_and_b32 s26, s2, 3')
    a('s_bfe_u32 s27, s2, 0x20002')
    a('s_mul_i32 s28, s27, 144')
    a('s_lshl_b32 s29, s28, 13')
    a('s_lshl_b32 s31, s21, 9')
    a('s_add_u32 s29, s29, s31')
    a('s_lshl_b32 s31, s26, 7')
    a('s_add_u32 s29, s29, s31')
    a('s_lshl_b32 s28, s28, 1')
    a('s_lshl_b32 s91, s21, 13')
    a('s_lshl_b32 s92, s27, 11')
    a('s_add_u32 s92, s92, s91')
    a('s_lshl_b32 s31, s26, 8')
    a('s_add_u32 s92, s92, s31')
    a('s_lshl_b32 s31, s22, 10')
    a('s_add_u32 s91, s91, s31')
    a('s_add_u32 s93, s91, 4096')
    a('s_waitcnt lgkmcnt(0)')
    srd(a, 52, 10, 576 * 8192)
    srd(a, 40, 18, WS_BYTES)
    srd(a, 48, 4, 2304)
    def qload():
        for t in range(4):
            a(f'buffer_load_dwordx4 v[{SNP+4*t}:{SNP+4*t+3}], v{VOFF}, s[40:43], s{91 if t < 2 else 93} offen offset:{QP_OFF + 2048*(t&1)} sc1')
    qload()
    a(f'buffer_load_dwordx4 v[{OLD}:{OLD+3}], v{VQP}, s[40:43], s92 offen offset:{QP_OFF} sc1')
    for i in range(18):
        a(f'buffer_load_dword v{XB+i}, v{VT1}, s[48:51], s28 offen offset:{16*i}')
    for i in range(18):
        r = HB + i * 4
        a(f'buffer_load_dwordx4 v[{r}:{r+3}], v{VT0}, s[52:55], s29 offen {wnt}')
        a('s_add_u32 s29, s29, 0x10000')
    if b0 == 1:
        a('s_barrier')
    srd(a, 60, 14, 2304)
    srd(a, 64, 16, 256)
    for r in range(4):
        a(f'v_mov_b32 v{QA+r}, -1')
    a(f'v_lshlrev_b32 v{VMT}, 3, v{VL}')
    a('s_lshl_b32 s46, s2, 11')
    a(f's_add_u32 s46, s46, {AP_OFF}')
    a('s_lshl_b32 s47, s25, 13')
    a('s_lshl_b32 s31, s21, 9')
    a('s_add_u32 s47, s47, s31')
    a(f's_add_u32 s47, s47, {OP_OFF}')
    a('s_cmp_lt_u32 s25, 9')
    a(f's_cselect_b32 s47, s47, 0x{OOB:x}')
    VO32 = 3
    a(f'v_mov_b32 v{VO32}, 0x{OOB:x}')
    a(f'v_cmp_gt_u32 vcc, 32, v{VL}')
    a(f'v_cndmask_b32 v{VO32}, v{VO32}, v{VOFF}, vcc')
    a(f'buffer_store_dwordx4 v[{QA}:{QA+3}], v{VOFF}, s[40:43], s46 offen sc1')
    VMLS = 61
    a(f'v_and_b32 v{VMLS}, 31, v{VL}')
    a(f'v_cmp_eq_u32 vcc, 0, v{VMLS}')
    a(f'v_lshrrev_b32 v{VMT}, 5, v{VL}')
    a(f'v_lshlrev_b32 v{VMT}, 3, v{VMT}')
    a(f'v_mov_b32 v{VMLS}, 0x{OOB:x}')
    a(f'v_cndmask_b32 v{VMLS}, v{VMLS}, v{VMT}, vcc')
    a(f'buffer_store_dwordx2 v[{QA}:{QA+1}], v{VMLS}, s[40:43], s46 offen offset:1024 sc1')
    a(f'buffer_store_dwordx4 v[{QA}:{QA+3}], v{VO32}, s[40:43], s47 offen sc1')
    a(f'v_mov_b32 v{QB}, {tot_static*WPP}')
    a(f'v_mov_b32 v{QB+1}, 0x{OOB:x}')
    a('s_cmp_eq_u32 s23, 0' if not noq else 's_cmp_eq_u32 s23, 99')
    a('s_cselect_b64 vcc, -1, 0')
    a(f'v_cndmask_b32 v{QB+1}, v{QB+1}, v{VAO}, vcc')
    a(f'buffer_store_dword v{QB}, v{QB+1}, s[40:43], s44 offen sc1')
    if b0 == 2:
        a('s_barrier')
    a('s_mov_b32 s94, 0x01000100')
    a('s_mov_b32 s95, 0x03020302')
    a('s_waitcnt vmcnt(40)')
    def packbits(dst):
        a(f'v_lshlrev_b32 v{dst}, 31, v{SNP}')
        for i in range(1, 16):
            a(f'v_alignbit_b32 v{dst}, v{SNP+i}, v{dst}, 1')
    packbits(VEXP)
    for r in range(4):
        a(f'v_not_b32 v{OLD+r}, v{OLD+r}')
    if b0 == 3:
        a('s_waitcnt vmcnt(4)')
        a('s_barrier')
    for i in range(18):
        if i == 0:
            a('s_waitcnt vmcnt(22)')
        for rs in (0, 1):
            bb = BB if rs == 0 else BB2
            tmp = QB + 2 + rs
            a(f'v_perm_b32 v{tmp}, v{XB+i}, v{XB+i}, s{94+rs}')
            for j in range(4):
                a(f'v_and_b32 v{bb+j}, v{tmp}, v{MK+j}')
        a(f's_waitcnt vmcnt({4 + 17 - i})')
        if i == 17 and stamp:
            a('s_memrealtime s[96:97]')
        for rs, D in ((0, D0), (1, D1)):
            bb = BB if rs == 0 else BB2
            r = HB + i * 4
            c = '0' if i == 0 else f'v[{D}:{D+3}]'
            a(f'v_mfma_f32_16x16x32_bf16 v[{D}:{D+3}], v[{r}:{r+3}], v[{bb}:{bb+3}], {c}')
    for r in range(4):
        a(f'v_permlane32_swap_b32 v{D1+r}, v{D0+r}')
    for r in range(4):
        a(f'v_mov_b32 v{SNP+r}, v{D1+r}')
    for r in range(4):
        a(f'v_permlane32_swap_b32 v{SNP+r}, v{D1+r}')
    for r in range(4):
        a(f'v_add_f32 v{D0+r}, v{D0+r}, v{D1+r}')
    for r in range(4):
        a(f'v_bfi_b32 v{D0+r}, 1, v{OLD+r}, v{D0+r}')
    a(f'v_lshlrev_b32 v{VQC}, 7, v{VT2}')
    a(f'v_lshl_add_u32 v{VQC}, v{VAL}, 6, v{VQC}')
    a(f'v_lshl_add_u32 v{VQC}, v{VT3}, 1, v{VQC}')
    a(f'v_mov_b32 v{QB}, 1')
    a('s_lshl_b32 s28, s21, 4')
    a('s_mov_b32 s31, 0x400000')
    a('s_waitcnt vmcnt(0)')
    a(f'buffer_store_dwordx4 v[{D0}:{D0+3}], v{VQP}, s[40:43], s92 offen offset:{QP_OFF} sc1')
    if stamp:
        a('s_memrealtime s[72:73]')
    qload()
    a('s_waitcnt vmcnt(4)')
    a(f'buffer_atomic_add v{QB}, v{VAO}, s[64:67], s28 offen sc1')
    a('s_mov_b32 s29, 0')
    a('s_waitcnt vmcnt(1)')
    a('s_branch L_qcheck')
    a.label('L_qpoll')
    a('s_and_b32 s26, s31, 3')
    a('s_cmp_lg_u32 s26, 0')
    a('s_cbranch_scc1 L_qnocnt')
    a(f'buffer_load_dword v{QB+1}, v{VAO}, s[64:67], s28 offen sc1')
    a('s_waitcnt vmcnt(0)')
    a(f'v_readfirstlane_b32 s29, v{QB+1}')
    a.label('L_qnocnt')
    qload()
    a('s_waitcnt vmcnt(0)')
    a('s_cmp_ge_u32 s29, 16')
    a('s_cbranch_scc1 L_qgo')
    a.label('L_qcheck')
    packbits(VT1)
    a(f'v_xor_b32 v{VT1}, v{VT1}, v{VEXP}')
    a(f'v_lshrrev_b32 v{VT1}, 16, v{VT1}')
    a(f'v_cmp_ne_u32 vcc, 0xffff, v{VT1}')
    a('s_sub_u32 s31, s31, 1')
    a('s_cbranch_scc1 L_qgo')
    a('s_cmp_lg_u64 vcc, 0')
    a('s_cbranch_scc1 L_qpoll')
    a.label('L_qgo')
    if stamp:
        a('s_memrealtime s[74:75]')
    for r in range(4):
        a(f'v_add_f32 v{SNP+r}, v{SNP+r}, v{SNP+4+r}')
        a(f'v_add_f32 v{SNP+8+r}, v{SNP+8+r}, v{SNP+12+r}')
    for r in range(4):
        a(f'v_add_f32 v{SNP+r}, v{SNP+r}, v{SNP+8+r}')
    a(f'v_cvt_pk_bf16_f32 v{SNP}, v{SNP}, v{SNP+1}')
    a(f'v_cvt_pk_bf16_f32 v{SNP+2}, v{SNP+2}, v{SNP+3}')
    a(f'ds_write_b16 v{VQC}, v{SNP} offset:{L_Q}')
    a(f'ds_write_b16_d16_hi v{VQC}, v{SNP} offset:{L_Q+16}')
    a(f'ds_write_b16 v{VQC}, v{SNP+2} offset:{L_Q+32}')
    a(f'ds_write_b16_d16_hi v{VQC}, v{SNP+2} offset:{L_Q+48}')
    a('s_waitcnt lgkmcnt(0)')
    a('s_barrier')
    if tlb:
        srd(a, 32, 6, 1 << 28)
        srd(a, 36, 8, 1 << 28)
        a(f'v_lshlrev_b32 v{VT1}, {tlb}, v{VL}')
        a(f'v_mov_b32 v{VT0}, 0x{OOB:x}')
        a(f'v_cmp_gt_u32 vcc, 0x800000, v{VT1}')
        a(f'v_cndmask_b32 v{VT1}, v{VT0}, v{VT1}, vcc')
        a(f'buffer_load_dword v{QB+2}, v{VT1}, s[32:35], s24 offen nt')
        a(f'buffer_load_dword v{QB+3}, v{VT1}, s[36:39], s24 offen nt')
    a('s_cmp_lg_u32 s21, s25')
    a('s_cbranch_scc1 L_nofin0')
    a('s_cmp_ge_u32 s25, 9')
    a('s_cbranch_scc1 L_nofin0')
    a(f'v_lshlrev_b32 v{VT1}, 4, v{VL}')
    a(f'v_cmp_gt_u32 vcc, 16, v{VL}')
    a(f'v_cndmask_b32 v{VT3}, 16, 0, vcc')
    a.label('L_allpoll')
    a(f'buffer_load_dword v{QB+1}, v{VT1}, s[64:67], 0 offen sc1')
    a('s_waitcnt vmcnt(0)')
    a(f'v_add_u32 v{QB+1}, v{QB+1}, v{VT3}')
    a(f'v_cmp_gt_u32 vcc, 16, v{QB+1}')
    a('s_sub_u32 s31, s31, 1')
    a('s_cbranch_scc1 L_nofin0')
    a('s_sleep 8')
    a('s_cmp_lg_u64 vcc, 0')
    a('s_cbranch_scc1 L_allpoll')
    a.label('L_nofin0')
    a('s_lshl_b32 s27, s21, 15')
    a(f's_add_u32 s27, s27, {AP_OFF}')
    for i in range(8):
        a(f's_add_u32 s{80+i}, s27, {4096*i}')
    a(f'v_lshlrev_b32 v{VNMC}, 3, v{VAL}')
    a(f'v_lshlrev_b32 v{VT0}, 8, v{VAL}')
    a(f'v_lshl_add_u32 v{VT0}, v{VT2}, 6, v{VT0}')
    a(f'v_and_b32 v{VT3}, 7, v{VL}')
    a(f'v_lshl_add_u32 v{VT0}, v{VT3}, 1, v{VT0}')
    a(f'v_mov_b32 v{VDUM}, 0xfffffffe')
    a('s_barrier')
    if stamp:
        a('s_memrealtime s[76:77]')
    RB = 64
    for w in range(NW):
        a(f'ds_read_b128 v[{RB+4*w}:{RB+4*w+3}], v{VOFF} offset:{L_P+1056*w}')
        a(f'ds_read_b64 v[{RB+4*NW+2*w}:{RB+4*NW+2*w+1}], v{VMT} offset:{L_P+1024+1056*w}')
    a('s_waitcnt lgkmcnt(0)')
    combine(a, NW, RB, RB + 4 * NW, RB + 4 * NW + 1, VM, VLS, ACC, 's30', 2)
    for r in (ACC, ACC+1, ACC+2, ACC+3, VM, VLS):
        a(f'v_min_u32 v{r}, v{r}, v{VDUM}')
    a(f'buffer_store_dwordx4 v[{ACC}:{ACC+3}], v{VOFF}, s[40:43], s46 offen sc1')
    a(f'buffer_store_dwordx2 v[{VM}:{VLS}], v{VMLS}, s[40:43], s46 offen offset:1024 sc1')
    if stamp == 4:
        a('s_memrealtime s[48:49]')
        a('s_mov_b64 s[50:51], 0'); a('s_mov_b64 s[52:53], 0'); a('s_mov_b64 s[54:55], 0'); a('s_mov_b64 s[56:57], 0')
        a('s_mov_b32 s58, s31')
        a('s_mov_b32 s59, s31')
    def hstamp(final):
        if not stamp:
            return
        if stamp == 3:
            a('s_memrealtime s[88:89]')
            a('s_waitcnt lgkmcnt(0)')
            a('s_not_b32 s90, s70')
            a(f'v_mov_b32 v{S0}, s88')
            a(f'v_mov_b32 v{S0+1}, s90')
            a(f'v_mov_b32 v{S0+2}, s76')
            a(f'v_mov_b32 v{S0+3}, s74')
            a(f'v_mov_b32 v{S0+4}, s70')
            a(f'buffer_atomic_umax v{S0}, v{VAO}, s[64:67], 0 offen offset:4 sc1')
            a(f'buffer_atomic_umax v{S0+1}, v{VAO}, s[64:67], 0 offen offset:8 sc1')
            a(f'buffer_atomic_umax v{S0+2}, v{VAO}, s[64:67], 0 offen offset:12 sc1')
            a(f'buffer_atomic_umax v{S0+3}, v{VAO}, s[64:67], 0 offen offset:20 sc1')
            a(f'buffer_atomic_umax v{S0+4}, v{VAO}, s[64:67], 0 offen offset:24 sc1')
            return
        a('s_memrealtime s[88:89]')
        a('s_waitcnt lgkmcnt(0)')
        a('s_lshl_b32 s90, s2, 4')
        a('s_add_u32 s90, s90, 14')
        a('s_lshl_b32 s90, s90, 5')
        a('s_add_u32 s90, s90, 0x800000')
        for i, sr in enumerate((70, 72, 74, 76, 78, 88)):
            a(f'v_mov_b32 v{S0+i}, s{sr}')
        a(f'v_mov_b32 v{S0+6}, {final}')
        a(f'v_mov_b32 v{S0+7}, s96')
        a(f'buffer_store_dwordx4 v[{S0}:{S0+3}], v{VAO}, s[40:43], s90 offen')
        a(f'buffer_store_dwordx4 v[{S0+4}:{S0+7}], v{VAO}, s[40:43], s90 offen offset:16')
        if stamp == 4:
            for i, sr in enumerate((48, 78, 50, 52, 54, 56, 58, 59)):
                a(f'v_mov_b32 v{S0+8+i}, s{sr}')
            a(f'buffer_store_dwordx4 v[{S0+8}:{S0+11}], v{VAO}, s[40:43], s90 offen offset:32')
            a(f'buffer_store_dwordx4 v[{S0+12}:{S0+15}], v{VAO}, s[40:43], s90 offen offset:48')
    a('s_cmp_lt_u32 s25, 9')
    a('s_cbranch_scc1 L_hwork')
    if stamp:
        a('s_mov_b64 s[78:79], s[76:77]')
    hstamp(0)
    a('s_endpgm')
    a.label('L_hwork')
    if stamp:
        a('s_mov_b64 s[78:79], s[76:77]')
    a('s_barrier')
    if stamp == 4:
        a('s_memrealtime s[50:51]')
    a('s_barrier')
    if stamp == 4:
        a('s_memrealtime s[52:53]')
    for w in range(NW):
        a(f'ds_read_b128 v[{RB+4*w}:{RB+4*w+3}], v{VOFF} offset:{L_P+1024*w}')
    a('s_waitcnt lgkmcnt(0)')
    for w in range(1, NW):
        for r in range(4):
            a(f'v_add_f32 v{RB+r}, v{RB+r}, v{RB+4*w+r}')
    def addhalves(R, Tm):
        for r in range(4):
            a(f'v_mov_b32 v{Tm+r}, v{R+r}')
        for r in range(4):
            a(f'v_permlane32_swap_b32 v{R+r}, v{Tm+r}')
        for r in range(4):
            a(f'v_add_f32 v{R+r}, v{R+r}, v{Tm+r}')
    addhalves(RB, RB + 4)
    for r in range(4):
        a(f'v_min_u32 v{RB+r}, v{RB+r}, v{VDUM}')
    a(f'buffer_store_dwordx4 v[{RB}:{RB+3}], v{VO32}, s[40:43], s47 offen sc1')
    if stamp == 4:
        a('s_memrealtime s[54:55]')
    a('s_cmp_eq_u32 s21, s25')
    a('s_cbranch_scc1 L_final')
    hstamp(0)
    a('s_endpgm')
    a.label('L_final')
    a(f'v_mul_u32_u24 v{VT1}, 1152, v{VAL}')
    a(f'v_lshl_add_u32 v{VT1}, v{VT2}, 6, v{VT1}')
    a(f'v_lshl_add_u32 v{VT1}, v{VT3}, 1, v{VT1}')
    a(f'v_mov_b32 v{VT0}, 0x{OOB:x}')
    a(f'v_cmp_gt_u32 vcc, 32, v{VL}')
    a(f'v_cndmask_b32 v{VT1}, v{VT0}, v{VT1}, vcc')
    a('s_lshl_b32 s26, s25, 7')
    a('s_lshl_b32 s27, s25, 13')
    a(f's_add_u32 s27, s27, {OP_OFF}')
    a('s_add_u32 s28, s27, 4096')
    NP = oppipe
    RFs = [RB + 8 + 32 * k for k in range(NP)]
    def opissue(k):
        for i in range(8):
            a(f'buffer_load_dwordx4 v[{RFs[k]+4*i}:{RFs[k]+4*i+3}], v{VOFF}, s[40:43], s{27 + i//4} offen offset:{1024*(i&3)} sc1')
    for k in range(NP - 1):
        opissue(k)
        if NP > 1:
            a('s_sleep 4')
    a.label('L_oppoll')
    for k in range(NP):
        opissue((k + NP - 1) % NP)
        a(f's_waitcnt vmcnt({8*(NP-1)})')
        RF = RFs[k]
        regs = list(range(RF, RF + 32))
        a(f'v_max_u32 v{VT0}, v{regs[0]}, v{regs[1]}')
        for i in range(2, 31, 2):
            a(f'v_max3_u32 v{VT0}, v{regs[i]}, v{regs[i+1]}, v{VT0}')
        a(f'v_cmp_eq_u32 vcc, -1, v{VT0}')
        a('s_cmp_eq_u64 vcc, 0')
        a(f's_cbranch_scc1 L_opgo{k}')
        a('s_sub_u32 s31, s31, 1')
        a(f's_cbranch_scc1 L_opgo{k}')
    a('s_branch L_oppoll')
    for k in range(NP):
        RF = RFs[k]
        a.label(f'L_opgo{k}')
        if stamp == 4:
            a('s_memrealtime s[56:57]')
            a('s_sub_u32 s59, s59, s31')
        for step in (4, 2, 1):
            for i in range(step):
                for r in range(4):
                    a(f'v_add_f32 v{RF+4*i+r}, v{RF+4*i+r}, v{RF+4*(i+step)+r}')
        for r in range(4):
            a(f'v_mov_b32 v{RB+r}, v{RF+r}')
        if k < NP - 1:
            a('s_branch L_opfin')
    a.label('L_opfin')
    RF = RB
    addhalves(RF, RF + 4)
    a(f'v_cvt_pk_bf16_f32 v{RF}, v{RF}, v{RF+1}')
    a(f'v_cvt_pk_bf16_f32 v{RF+2}, v{RF+2}, v{RF+3}')
    a(f'buffer_store_short v{RF}, v{VT1}, s[60:63], s26 offen')
    a(f'buffer_store_short_d16_hi v{RF}, v{VT1}, s[60:63], s26 offen offset:16')
    a(f'buffer_store_short v{RF+2}, v{VT1}, s[60:63], s26 offen offset:32')
    a(f'buffer_store_short_d16_hi v{RF+2}, v{VT1}, s[60:63], s26 offen offset:48')
    hstamp(1)
    a.label('L_done')
    a('s_endpgm')
    nv = (a.maxv + 1 + 7) // 8 * 8
    s = HEADER
    if noq:
        s += f'; cntinit={tot_static*WPP}\n'
    s += f'; @launch grid=(256,1,1) block=({64*(NW+1)},1,1) lds={lds_bytes}\n'
    s += '.amdgcn_target "amdgcn-amd-amdhsa--gfx950"\n.text\n'
    s += a.text()
    s += f""".section .rodata,"a"
.p2align 6
.amdhsa_kernel {kn}
  .amdhsa_next_free_vgpr {nv}
  .amdhsa_next_free_sgpr 100
  .amdhsa_accum_offset {nv}
  .amdhsa_group_segment_fixed_size 0
  .amdhsa_kernarg_size 64
  .amdhsa_user_sgpr_count 2
  .amdhsa_user_sgpr_kernarg_segment_ptr 1
  .amdhsa_system_sgpr_workgroup_id_x 1
.end_amdhsa_kernel
"""
    return s

if __name__ == '__main__':
    ap = argparse.ArgumentParser()
    ap.add_argument('--T', type=int, default=4)
    ap.add_argument('--NBUF', type=int, default=2)
    ap.add_argument('--NW', type=int, default=4)
    ap.add_argument('--nreg', type=int, default=1)
    ap.add_argument('--ch', type=int, default=1)
    ap.add_argument('--cache', default='nt')
    ap.add_argument('--rot', type=int, default=0)
    ap.add_argument('--stamp', type=int, default=0)
    ap.add_argument('--b0', type=int, default=0)
    ap.add_argument('--prio', type=int, default=1)
    ap.add_argument('--pf', type=int, default=0)
    ap.add_argument('--NS', type=int, default=0)
    ap.add_argument('--noq', type=int, default=0)
    ap.add_argument('--static', type=int, default=0)
    ap.add_argument('--slp', type=int, default=0)
    ap.add_argument('--nocomp', type=int, default=0)
    ap.add_argument('--notail', type=int, default=0)
    ap.add_argument('--NL', type=int, default=0)
    ap.add_argument('--wnt', default='nt')
    ap.add_argument('--burst', type=int, default=0)
    ap.add_argument('--fs', type=int, default=0)
    ap.add_argument('--oppipe', type=int, default=1)
    ap.add_argument('--tlb', type=int, default=0)
    ap.add_argument('--dly', type=int, default=0)
    ap.add_argument('-o', default=f'cdna_kernels/{NAME}.s')
    args = ap.parse_args()
    open(args.o, 'w').write(gen(args.T, args.NBUF, args.NW, args.nreg, args.ch, args.cache, args.rot, args.stamp, args.b0, args.prio, args.pf, args.NS, args.noq, args.static, args.slp, args.nocomp, args.notail, args.NL, args.wnt, args.burst, args.fs, args.oppipe, args.tlb, args.dly))
```

```python
import sys, struct, argparse
sys.path.insert(0, 'tools')
from asmlib import Asm

NAME = 'standalone__gqa_block_cached__decode'
CSCALE = (128 ** -0.5) * 1.4426950408889634
def f32bits(x): return struct.unpack('<I', struct.pack('<f', x))[0]

QP_OFF = 0
AP_OFF = 1 << 20
OP_OFF = 2 << 20
CNT_OFF = 3 << 20
WS_BYTES = 1 << 30
OOB = 0x40000000

HEADER = """; Kernarg layout for this problem (64 bytes, ptrs only, base s[0:1]):
;   offset  16: d_in[2] v_cache  shape=(2, 16, 32768, 128) dtype=bfloat16
"""

DOC = '''; ---------------------------------------------------------------------------------------------
;  main loop : tile = 16 keys (4 KiB K + 4 KiB V, coalesced nt loads). QK^T by v_dot2_f32_bf16 + DPP reduction, online softmax
;              (true running max, fp32), PV by v_mfma_f32_16x16x32_bf16 with a one-hot P operand. First 58 tiles per wave
; ---------------------------------------------------------------------------------------------
'''

def srd(a, d, lo, nbytes):
    a(f's_mov_b32 s{d}, s{lo}')
    a(f's_and_b32 s{d+1}, s{lo+1}, 0xffff')
    a(f's_mov_b32 s{d+2}, 0x{nbytes:x}')
    a(f's_mov_b32 s{d+3}, 0x00020000')

def masks(a, vl, vm, vt0, vt1):
    a(f'v_and_b32 v{vt0}, 1, v{vl}')
    a(f'v_lshlrev_b32 v{vt0}, 4, v{vt0}')
    a(f'v_mov_b32 v{vt1}, 0xffff')
    a(f'v_lshlrev_b32 v{vt0}, v{vt0}, v{vt1}')
    a(f'v_bfe_u32 v{vt1}, v{vl}, 1, 2')
    for j in range(4):
        a(f'v_cmp_eq_u32 vcc, {j}, v{vt1}')
        a(f'v_cndmask_b32 v{vm+j}, 0, v{vt0}, vcc')

def combine(a, n, RO, RM, RL, VM, VLS, ACC, sc, mstride=1):
    M = lambda i: RM + i * mstride
    L = lambda i: RL + i * mstride
    a(f'v_max_f32 v{VM}, v{M(0)}, v{M(1)}')
    for i in range(2, n, 2):
        a(f'v_max3_f32 v{VM}, v{M(i)}, v{M(i+1)}, v{VM}')
    for i in range(n):
        a(f'v_sub_f32 v{M(i)}, v{M(i)}, v{VM}')
    for i in range(n):
        a(f'v_mul_f32 v{M(i)}, {sc}, v{M(i)}')
    for i in range(n):
        a(f'v_exp_f32 v{M(i)}, v{M(i)}')
    a(f'v_mul_f32 v{VLS}, v{M(0)}, v{L(0)}')
    for r in range(4):
        a(f'v_mul_f32 v{ACC+r}, v{M(0)}, v{RO+r}')
    for i in range(1, n):
        a(f'v_fmac_f32 v{VLS}, v{M(i)}, v{L(i)}')
        for r in range(4):
            a(f'v_fmac_f32 v{ACC+r}, v{M(i)}, v{RO+4*i+r}')

def anymarker(a, regs, vt, label_retry, scnt, label_giveup):
    a(f'v_max_u32 v{vt}, v{regs[0]}, v{regs[1]}')
    for i in range(2, len(regs) - 1, 2):
        a(f'v_max3_u32 v{vt}, v{regs[i]}, v{regs[i+1]}, v{vt}')
    if len(regs) % 2:
        a(f'v_max_u32 v{vt}, v{regs[-1]}, v{vt}')
    a(f'v_cmp_eq_u32 vcc, -1, v{vt}')
    a(f's_sub_u32 {scnt}, {scnt}, 1')
    a(f's_cbranch_scc1 {label_giveup}')
    a('s_cmp_lg_u64 vcc, 0')
    a(f's_cbranch_scc1 {label_retry}')

def gen(T=4, NBUF=2, NW=4, nreg=1, ch=1, cache='nt', rot=0, stamp=0, b0=0, prio=1, pf=0, NS=0, noq=0, static=0, slp=0, nocomp=0, notail=0, NL=0, wnt='nt', burst=0, fs=0, oppipe=1, tlb=0, dly=0):
    a = Asm()
    kn = NAME + '_kernel'
    a.raw(f'.globl {kn}\n.p2align 8\n.type {kn},@function\n{kn}:')
    NTP = 32768 // (4 * T)
    tile_bytes = T * 1024
    tsh = tile_bytes.bit_length() - 1
    WPP = 8 * NW
    BUF = 64
    base_static = 2 * NBUF + NS + NL
    first_static = 1 if (NS and fs >= base_static + NBUF) else 0
    n1 = max(0, (fs - base_static - first_static * NBUF) // NBUF)
    tot_static = base_static + (first_static + n1) * NBUF
    def kreg(buf, i): return BUF + buf * 8 * T + 4 * i
    def vreg(buf, i): return BUF + buf * 8 * T + 4 * T + 4 * i
    VL, VOFF = 1, 2
    nvo = (T + 3) // 4
    assert nvo <= 2
    QA, QB, MK, ACC = 8, 12, 16, 20
    VM, VLS, VMT, VT0, VT1, VAL, VNMC = 24, 25, 26, 27, 28, 29, 30
    VAO = 31
    S0, SN = 32, 40
    BB, BB2 = 4, 48
    VA = 52
    VDUM = 60
    VT2, VT3 = 62, 63
    assert T <= 8 and NBUF <= 8
    SOFF = 80
    L_Q = 0
    L_O = 512
    L_P = 2048
    assert NW == 4
    L_G = L_P + NW * 1536
    L_S = (L_G + 4 * 1056 + 1023) // 1024 * 1024
    lds_bytes = L_S + NW * NL * 2 * tile_bytes
    assert lds_bytes <= 160 * 1024
    assert NL == 0 or (T == 4 and NS >= 1)
    a('s_cmp_ge_u32 s2, 256')
    a('s_cbranch_scc1 L_done')
    if stamp:
        a('s_memrealtime s[70:71]')
    a('s_load_dwordx16 s[4:19], s[0:1], 0')
    a(f'v_and_b32 v{VL}, 63, v0')
    a(f'v_lshrrev_b32 v{VT0}, 6, v0')
    a(f'v_lshlrev_b32 v{VOFF}, 4, v{VL}')
    for j in range(1, nvo):
        a(f'v_add_u32 v{VOFF+j}, {4096*j}, v{VOFF}')
    a(f'v_readfirstlane_b32 s20, v{VT0}')
    a(f'v_mov_b32 v{VAO}, 0x{OOB:x}')
    a(f'v_cmp_eq_u32 vcc, 0, v{VL}')
    a(f'v_cndmask_b32 v{VAO}, v{VAO}, 0, vcc')
    a('s_lshr_b32 s21, s2, 4')
    a('s_bfe_u32 s22, s2, 0x10003')
    a('s_and_b32 s23, s2, 7')
    a('s_lshl_b32 s24, s22, 4')
    a('s_add_u32 s24, s24, s21')
    a('s_lshl_b32 s44, s24, 8')
    a(f's_add_u32 s44, s44, {CNT_OFF}')
    a(f's_mul_i32 s45, s24, {rot}')
    a('s_lshl_b32 s24, s24, 23')
    a(f's_mov_b32 s30, 0x{f32bits(CSCALE):x}')
    masks(a, VL, MK, VT0, VT1)
    a('s_cmp_eq_u32 s20, 0')
    a('s_cbranch_scc1 L_helper')

    lr, lc = nreg.bit_length() - 1, ch.bit_length() - 1
    ln = NTP.bit_length() - 1
    def tick2off(st, sd):
        a(f's_add_u32 s29, {st}, s45')
        a(f's_and_b32 s29, s29, {NTP-1}')
        if nreg > 1:
            a(f's_bfe_u32 s31, s29, 0x{(lr << 16) | lc:x}')
            a(f's_lshl_b32 s31, s31, {ln-lr}')
            a(f's_lshr_b32 s28, s29, {lr+lc}')
            a(f's_lshl_b32 s28, s28, {lc}')
            a(f's_or_b32 s31, s31, s28')
            a(f's_and_b32 s29, s29, {ch-1}')
            a(f's_or_b32 s29, s29, s31')
        a(f's_lshl_b32 s29, s29, {tsh}')
        a('s_add_u32 s29, s29, s24')
        a(f's_cmp_lt_u32 {st}, {NTP}')
        a(f's_cselect_b32 {sd}, s29, 0x10000000')
    a(f's_mul_i32 s25, s23, {NW}')
    a('s_add_u32 s25, s25, s20')
    a('s_sub_u32 s25, s25, 1')
    assert NBUF + NS + NL <= 12
    for b in range(NBUF + NS + NL):
        a(f's_add_u32 s26, s25, {b*WPP}')
        tick2off('s26', f's{SOFF+b}')
    for b in range(NBUF):
        a(f's_add_u32 s26, s25, {(NBUF+NS+NL+b)*WPP}')
        a(f'v_mov_b32 v{VA+b}, s26')
    if NL:
        a('s_sub_u32 s27, s20, 1')
        a(f's_mul_i32 s47, s27, {NL*2*tile_bytes}')
        a(f's_add_u32 s47, s47, {L_S}')
        a(f'v_add_u32 v{VT2}, s47, v{VOFF}')
    a(f'v_and_b32 v{VT0}, 15, v{VL}')
    a(f'v_lshlrev_b32 v{VT0}, 4, v{VT0}')
    a(f'v_bfe_u32 v{VT1}, v{VL}, 3, 1')
    a(f'v_lshl_add_u32 v{VT0}, v{VT1}, 8, v{VT0}')
    a(f'v_xor_b32 v{VT1}, 0x100, v{VT0}')
    a(f'v_mov_b32 v{VM}, 0xff800000')
    a(f'v_mov_b32 v{VLS}, 0')
    for r in range(4):
        a(f'v_mov_b32 v{ACC+r}, 0')
    a(f'v_mov_b32 v{VDUM+1}, 0x{OOB:x}')
    a('s_waitcnt lgkmcnt(0)')
    srd(a, 32, 6, 1 << 28)
    srd(a, 36, 8, 1 << 28)
    srd(a, 40, 18, WS_BYTES)
    srd(a, 56, 12, 4096 * 1152)
    if b0:
        a('s_barrier')
    Q = []
    def issueK(buf):
        for i in range(T):
            a(f'buffer_load_dwordx4 v[{kreg(buf,i)}:{kreg(buf,i)+3}], v{VOFF+i//4}, s[32:35], s{SOFF+buf} offen offset:{(i%4)*1024} {cache}')
            Q.append(('K', buf))
    def issueV(buf):
        for i in range(T):
            a(f'buffer_load_dwordx4 v[{vreg(buf,i)}:{vreg(buf,i)+3}], v{VOFF+i//4}, s[36:39], s{SOFF+buf} offen offset:{(i%4)*1024} {cache}')
            Q.append(('V', buf))
    def waitfor(tag):
        idx = max(i for i, t in enumerate(Q) if t == tag)
        n = len(Q) - 1 - idx
        a(f's_waitcnt vmcnt({min(n, 63)})')
        del Q[:idx + 1]
        return n
    for b in range(NBUF + NS):
        if pf and b >= pf:
            waitfor(('V', b - pf))
        if b < NBUF:
            a(f'buffer_load_dword v{VDUM}, v{VDUM+1}, s[40:43], 0 offen')
            Q.append(('A', b))
        issueK(b); issueV(b)
        assert len(Q) <= 63
    for k in range(NL):
        b = NBUF + NS + k
        if pf and b >= pf:
            waitfor(('V', b - pf))
        for tag, sr, off in (('K', 32, 0), ('V', 36, tile_bytes)):
            a(f's_add_u32 m0, s47, {k*2*tile_bytes + off}')
            a('s_nop 0')
            for i in range(T):
                a(f'buffer_load_dwordx4 v{VOFF}, s[{sr}:{sr+3}], s{SOFF+b} offen offset:{i*1024} {cache} lds')
                Q.append((tag, b))
        assert len(Q) <= 63
    if not noq:
        a('s_barrier')
    a(f'ds_read_b128 v[{QA}:{QA+3}], v{VT0} offset:{L_Q}')
    a(f'ds_read_b128 v[{QB}:{QB+3}], v{VT1} offset:{L_Q}')
    if stamp:
        a('s_memrealtime s[72:73]')
    a('s_waitcnt lgkmcnt(0)')
    w1 = T + (NBUF - 1) * (2 * T + 1)
    w2 = (NBUF - 1) * (2 * T + 1) + T + 1
    if burst:
        w2 = (NBUF - 1) * (2 * T + 1)
    assert w2 <= 63
    a_real = a
    def tile(buf, mode):
        refill = mode != 'stash'
        a0 = a_real
        def a(t):
            op = t.split()[0]
            if nocomp & 1 and op.startswith('v_dot2'): return
            if nocomp & 2 and op.startswith('v_') and not op.startswith('v_dot2') and not op.startswith('v_mfma') and 'readfirstlane' not in op and f'v{VA+buf},' not in t: return
            if nocomp & 4 and op.startswith('v_mfma'): return
            a0(t)
        st = static or mode == 'sloop' or (mode == 'first' and first_static)
        if mode == 'sloop':
            a(f's_waitcnt vmcnt({w1})')
        elif mode == 'loop':
            a(f's_cmp_ge_u32 s{SOFF+buf}, 0x10000000')
            a('s_cbranch_scc1 L_exit')
            a(f's_waitcnt vmcnt({w1})')
        elif ('K', buf) in Q:
            waitfor(('K', buf))
        if refill:
            a(f'v_readfirstlane_b32 s26, v{VA+buf}')
        for i in range(T):
            k = kreg(buf, i)
            for j in range(4):
                c = '0' if j == 0 else f'v{S0+i}'
                a(f'v_dot2_f32_bf16 v{S0+i}, v{k+j}, v{QA+j}, {c}')
                c = '0' if j == 0 else f'v{SN+i}'
                a(f'v_dot2_f32_bf16 v{SN+i}, v{k+j}, v{QB+j}, {c}')
        vpend = ('V', buf) in Q
        if vpend:
            for i, t in enumerate(Q):
                if t == ('V', buf): Q[i] = ('Vold', buf)
        def refillK():
            if st:
                a(f'v_add_u32 v{VA+buf}, {NBUF*WPP}, v{VA+buf}')
                tick2off('s26', f's{SOFF+buf}')
                a(f'buffer_load_dword v{VDUM}, v{VDUM+1}, s[40:43], 0 offen')
            else:
                a(f'v_mov_b32 v{VA+buf}, 1')
                tick2off('s26', f's{SOFF+buf}')
                if burst and NBUF == 1 and mode == 'loop':
                    a('s_cbranch_scc0 L_exit')
                a(f'buffer_atomic_add v{VA+buf}, v{VAO}, s[40:43], s44 offen sc0 sc1')
            Q.append(('A', buf))
            issueK(buf)
        if refill and not burst:
            refillK()
        for i in range(T):
            a(f'v_add_f32_dpp v{S0+i}, v{SN+i}, v{S0+i} row_ror:8 row_mask:0xf bank_mask:0xf')
        for i in range(T):
            a(f'v_add_f32_dpp v{S0+i}, v{S0+i}, v{S0+i} row_half_mirror row_mask:0xf bank_mask:0xf')
        for i in range(T):
            a(f'v_add_f32_dpp v{S0+i}, v{S0+i}, v{S0+i} quad_perm:[1,0,3,2] row_mask:0xf bank_mask:0xf')
        for i in range(T):
            a(f'v_add_f32_dpp v{S0+i}, v{S0+i}, v{S0+i} quad_perm:[2,3,0,1] row_mask:0xf bank_mask:0xf')
        a(f'v_max3_f32 v{VMT}, v{S0}, v{S0+1}, v{VM}')
        for i in range(2, T, 2):
            a(f'v_max3_f32 v{VMT}, v{S0+i}, v{S0+i+1}, v{VMT}')
        a(f'v_mov_b32 v{VT0}, v{VMT}')
        a(f'v_permlane16_swap_b32 v{VMT}, v{VT0}')
        a(f'v_max_f32 v{VMT}, v{VMT}, v{VT0}')
        a(f'v_mov_b32 v{VT0}, v{VMT}')
        a(f'v_permlane32_swap_b32 v{VMT}, v{VT0}')
        a(f'v_max_f32 v{VMT}, v{VMT}, v{VT0}')
        a(f'v_sub_f32 v{VT0}, v{VM}, v{VMT}')
        a(f'v_mul_f32 v{VT0}, s30, v{VT0}')
        a(f'v_exp_f32 v{VAL}, v{VT0}')
        a(f'v_mul_f32 v{VNMC}, s30, v{VMT}')
        a(f'v_mov_b32 v{VM}, v{VMT}')
        for i in range(T):
            a(f'v_fma_f32 v{S0+i}, v{S0+i}, s30, -v{VNMC}')
        for i in range(T):
            a(f'v_exp_f32 v{S0+i}, v{S0+i}')
        for r in range(4):
            a(f'v_mul_f32 v{ACC+r}, v{ACC+r}, v{VAL}')
        a(f'v_mul_f32 v{VLS}, v{VLS}, v{VAL}')
        for i in range(T):
            a(f'v_add_f32 v{VLS}, v{VLS}, v{S0+i}')
            a(f'v_cvt_pk_bf16_f32 v{SN+i}, v{S0+i}, v{S0+i}')
        if mode in ('loop', 'sloop'):
            a(f's_waitcnt vmcnt({w2})')
        elif vpend:
            waitfor(('Vold', buf))
        for i in range(T):
            bb = BB if i % 2 == 0 else BB2
            for j in range(4):
                a(f'v_and_b32 v{bb+j}, v{SN+i}, v{MK+j}')
            v = vreg(buf, i)
            a(f'v_mfma_f32_16x16x32_bf16 v[{ACC}:{ACC+3}], v[{v}:{v+3}], v[{bb}:{bb+3}], v[{ACC}:{ACC+3}]')
        if refill:
            if burst:
                refillK()
            issueV(buf)
    if NS:
        for b in range(NBUF):
            tile(b, 'first')
        for b in range(NBUF, NBUF + NS):
            tile(b, 'stash')
        def readback(k):
            b = NBUF + NS + k
            dst = NBUF + (k % NS)
            if ('V', b) in Q:
                waitfor(('V', b))
            for i in range(T):
                a(f'ds_read_b128 v[{kreg(dst,i)}:{kreg(dst,i)+3}], v{VT2} offset:{k*2*tile_bytes + i*1024}')
            for i in range(T):
                a(f'ds_read_b128 v[{vreg(dst,i)}:{vreg(dst,i)+3}], v{VT2} offset:{k*2*tile_bytes + tile_bytes + i*1024}')
        nrb = min(NS, 2)
        for k in range(min(nrb - 1, NL)):
            readback(k)
        for k in range(NL):
            if nrb > 1 and k + 1 < NL:
                readback(k + 1)
                a(f's_waitcnt lgkmcnt({2*T})')
            else:
                if nrb == 1:
                    readback(k)
                a('s_waitcnt lgkmcnt(0)')
            tile(NBUF + (k % NS), 'stash')
        exp = []
        for b in range(NBUF):
            exp += [('A', b)] + [('K', b)] * T + [('V', b)] * T
        assert Q == exp, Q
    RPW = 256 // NW
    NWO = RPW // 8
    WO = BUF + NBUF * 8 * T
    a(f'v_lshrrev_b32 v{VT2}, 4, v{VL}')
    a(f'v_bfe_u32 v{VT3}, v{VL}, 3, 1')
    a(f'v_lshl_add_u32 v{VT0}, v{VT2}, 1, v{VT3}')
    a(f'v_mul_u32_u24 v{VT0}, 1152, v{VT0}')
    a(f'v_and_b32 v{VT1}, 7, v{VL}')
    a(f'v_lshl_add_u32 v{VT0}, v{VT1}, 4, v{VT0}')
    a('s_sub_u32 s27, s20, 1')
    a('s_and_b32 s25, s2, 15')
    a(f's_mul_i32 s28, s21, {NW}')
    a('s_add_u32 s28, s28, s27')
    a(f's_mul_i32 s28, s28, {RPW*1152}')
    a('s_lshl_b32 s29, s25, 7')
    a('s_add_u32 s28, s28, s29')
    a('s_cmp_lt_u32 s25, 9')
    a('s_cselect_b32 s28, s28, 0x10000000')
    for i in range(NWO):
        a(f'buffer_load_dwordx4 v[{WO+4*i}:{WO+4*i+3}], v{VT0}, s[56:59], s28 offen {wnt}')
        a('s_add_u32 s28, s28, 9216')
    if n1:
        a(f's_mov_b32 s46, {n1}')
        a.label('L_sloop')
        for b in range(NBUF):
            tile(b, 'sloop')
        a('s_sub_u32 s46, s46, 1')
        a('s_cmp_lg_u32 s46, 0')
        a('s_cbranch_scc1 L_sloop')
    a.label('L_loop')
    for b in range(NBUF):
        tile(b, 'loop')
    a('s_branch L_loop')
    a.label('L_exit')
    if notail:
        a('s_waitcnt vmcnt(0)')
        a('s_memrealtime s[74:75]')
        a('s_waitcnt lgkmcnt(0)')
        a('s_sub_u32 s27, s20, 1')
        a('s_lshl_b32 s76, s2, 4')
        a('s_add_u32 s76, s76, s27')
        a('s_lshl_b32 s76, s76, 5')
        a('s_add_u32 s76, s76, 0x800000')
        a('s_getreg_b32 s77, hwreg(HW_REG_XCC_ID)')
        a(f'v_mov_b32 v{S0}, s70')
        a(f'v_mov_b32 v{S0+1}, s72')
        a(f'v_mov_b32 v{S0+2}, s74')
        a(f'v_mov_b32 v{S0+3}, s77')
        a(f'buffer_store_dwordx4 v[{S0}:{S0+3}], v{VAO}, s[40:43], s76 offen')
        a('s_lshl_b32 s76, s2, 4')
        a('s_add_u32 s76, s76, 14')
        a('s_lshl_b32 s76, s76, 5')
        a('s_add_u32 s76, s76, 0x800000')
        a(f'buffer_store_dwordx4 v[{S0}:{S0+3}], v{VAO}, s[40:43], s76 offen')
        a(f'v_mov_b32 v{S0+1}, s74')
        a(f'buffer_store_dwordx4 v[{S0}:{S0+3}], v{VAO}, s[40:43], s76 offen offset:16')
        a('s_endpgm')
    if noq:
        a('s_barrier')
    if stamp:
        a('s_memrealtime s[74:75]')
    a(f'v_mov_b32 v{VT0}, v{VLS}')
    a(f'v_permlane16_swap_b32 v{VLS}, v{VT0}')
    a(f'v_add_f32 v{VLS}, v{VLS}, v{VT0}')
    a(f'v_mov_b32 v{VT0}, v{VLS}')
    a(f'v_permlane32_swap_b32 v{VLS}, v{VT0}')
    a(f'v_add_f32 v{VLS}, v{VLS}, v{VT0}')
    PS = 1056
    a(f'v_and_b32 v{VT1}, 7, v{VL}')
    a(f'v_lshlrev_b32 v{VT1}, 2, v{VT1}')
    a(f'v_lshl_add_u32 v{VT1}, v{VT2}, 7, v{VT1}')
    a(f'v_lshl_add_u32 v{VT1}, v{VT3}, 9, v{VT1}')
    a(f's_mul_i32 s29, s27, {PS}')
    a(f'v_add_u32 v{VT1}, s29, v{VT1}')
    a(f'v_lshlrev_b32 v{VT0}, 3, v{VT3}')
    a(f'v_add_u32 v{VT0}, s29, v{VT0}')
    for r in range(4):
        a(f'ds_write_b32 v{VT1}, v{ACC+r} offset:{L_P+32*r}')
    a(f'ds_write_b64 v{VT0}, v[{VM}:{VLS}] offset:{L_P+1024}')
    def sstamp():
        if stamp:
            a('s_waitcnt lgkmcnt(0)')
            a('s_lshl_b32 s76, s2, 4')
            a('s_add_u32 s76, s76, s27')
            a('s_lshl_b32 s76, s76, 5')
            a('s_add_u32 s76, s76, 0x800000')
            a('s_getreg_b32 s77, hwreg(HW_REG_XCC_ID)')
            a(f'v_mov_b32 v{S0}, s70')
            a(f'v_mov_b32 v{S0+1}, s72')
            a(f'v_mov_b32 v{S0+2}, s74')
            a(f'v_mov_b32 v{S0+3}, s77')
            a(f'buffer_store_dwordx4 v[{S0}:{S0+3}], v{VAO}, s[40:43], s76 offen')
            if stamp == 4:
                a(f'v_mov_b32 v{S0+4}, s78')
                a(f'v_mov_b32 v{S0+5}, s88')
                a(f'v_mov_b32 v{S0+6}, s90')
                a(f'v_mov_b32 v{S0+7}, 0')
                a(f'buffer_store_dwordx4 v[{S0+4}:{S0+7}], v{VAO}, s[40:43], s76 offen offset:16')
    a('s_waitcnt lgkmcnt(0)')
    a('s_barrier')
    a('s_cmp_lt_u32 s25, 9')
    a('s_cbranch_scc1 L_work')
    if stamp == 4:
        a('s_mov_b32 s78, 0'); a('s_mov_b32 s88, 0'); a('s_mov_b32 s90, 0')
    sstamp()
    a('s_endpgm')
    a.label('L_work')
    a('s_lshl_b32 s28, s21, 15')
    a('s_lshl_b32 s29, s27, 13')
    a('s_add_u32 s28, s28, s29')
    a(f's_add_u32 s80, s28, {AP_OFF}')
    a('s_add_u32 s81, s80, 4096')
    a(f'v_lshrrev_b32 v{VAL}, 5, v{VL}')
    a(f'v_lshlrev_b32 v{VAL}, 3, v{VAL}')
    a('s_mov_b32 s31, 0x400000')
    a('s_mov_b32 s28, 0xf')
    a('s_mov_b32 s94, 0x01000100')
    a('s_mov_b32 s95, 0x03020302')
    a(f'v_cmp_gt_u32 s[92:93], 32, v{VL}')
    GB = BUF
    GM = BUF + 16
    a('s_waitcnt vmcnt(0)')
    a.label('L_appoll')
    for i in range(4):
        a(f's_bitcmp1_b32 s28, {i}')
        a(f's_cbranch_scc0 L_apskip{i}')
        a(f'buffer_load_dwordx4 v[{GB+4*i}:{GB+4*i+3}], v{VOFF}, s[40:43], s{80+i//2} offen offset:{2048*(i&1)} sc1')
        a(f'buffer_load_dwordx2 v[{GM+2*i}:{GM+2*i+1}], v{VAL}, s[40:43], s{80+i//2} offen offset:{2048*(i&1)+1024} sc1')
        a.label(f'L_apskip{i}')
    a('s_waitcnt vmcnt(0)')
    for i in range(4):
        a(f'v_max3_u32 v{S0+i}, v{GB+4*i}, v{GB+4*i+1}, v{GB+4*i+2}')
    for i in range(4):
        a(f'v_max3_u32 v{S0+i}, v{GB+4*i+3}, v{GM+2*i}, v{S0+i}')
    for i in range(4):
        a(f'v_max_u32 v{S0+i}, v{GM+2*i+1}, v{S0+i}')
    a(f'v_max3_u32 v{VT0}, v{S0}, v{S0+1}, v{S0+2}')
    a(f'v_max_u32 v{VT0}, v{S0+3}, v{VT0}')
    a(f'v_cmp_eq_u32 vcc, -1, v{VT0}')
    a('s_cmp_eq_u64 vcc, 0')
    a('s_cbranch_scc1 L_apgo')
    a('s_mov_b32 s28, 0')
    for i in range(4):
        a(f'v_cmp_eq_u32 vcc, -1, v{S0+i}')
        a('s_cmp_lg_u64 vcc, 0')
        a(f's_cselect_b32 s29, {1 << i}, 0')
        a('s_or_b32 s28, s28, s29')
    a('s_sub_u32 s31, s31, 1')
    a('s_cbranch_scc1 L_apgo')
    if slp:
        a(f's_sleep {slp}')
    a('s_branch L_appoll')
    a.label('L_apgo')
    if stamp == 4:
        a('s_memrealtime s[78:79]')
    combine(a, 4, GB, GM, GM + 1, VM, VLS, ACC, 's30', 2)
    a(f's_mul_i32 s29, s27, {PS}')
    a(f'v_add_u32 v{VT0}, s29, v{VOFF}')
    a(f'v_add_u32 v{VT1}, s29, v{VAL}')
    a(f'ds_write_b128 v{VT0}, v[{ACC}:{ACC+3}] offset:{L_G}')
    a(f'ds_write_b64 v{VT1}, v[{VM}:{VLS}] offset:{L_G+1024}')
    a(f'v_mul_u32_u24 v{VT3}, {2*PS}, v{VT3}')
    a(f'v_lshl_add_u32 v{VT2}, v{VT2}, 3, v{VT3}')
    a('s_lshl_b32 s29, s27, 8')
    a(f'v_add_u32 v{VT2}, s29, v{VT2}')
    a('s_lshr_b32 s29, s27, 1')
    a('s_lshl_b32 s29, s29, 3')
    a(f'v_add_u32 v{VT3}, s29, v{VT3}')
    a('s_lshl_b32 s29, s27, 10')
    a(f'v_add_u32 v{VT0}, s29, v{VOFF}')
    a('s_waitcnt lgkmcnt(0)')
    a('s_barrier')
    if stamp == 4:
        a('s_memrealtime s[88:89]')
    RA = BUF
    a(f'ds_read_b64 v[{S0}:{S0+1}], v{VT3} offset:{L_G+1024}')
    a(f'ds_read_b64 v[{S0+2}:{S0+3}], v{VT3} offset:{L_G+1024+PS}')
    for i in range(NWO):
        if i == 6:
            a('s_waitcnt lgkmcnt(8)')
        a(f'ds_read_b64 v[{RA+2*i}:{RA+2*i+1}], v{VT2} offset:{L_G+32*i}')
        a(f'ds_read_b64 v[{RA+16+2*i}:{RA+16+2*i+1}], v{VT2} offset:{L_G+32*i+PS}')
    a(f'v_max_f32 v{VM}, v{S0}, v{S0+2}')
    a(f'v_sub_f32 v{S0}, v{S0}, v{VM}')
    a(f'v_sub_f32 v{S0+2}, v{S0+2}, v{VM}')
    a(f'v_mul_f32 v{S0}, s30, v{S0}')
    a(f'v_mul_f32 v{S0+2}, s30, v{S0+2}')
    a(f'v_exp_f32 v{S0}, v{S0}')
    a(f'v_exp_f32 v{S0+2}, v{S0+2}')
    a(f'v_mul_f32 v{VLS}, v{S0}, v{S0+1}')
    a(f'v_fmac_f32 v{VLS}, v{S0+2}, v{S0+3}')
    a(f'v_rcp_f32 v{VLS}, v{VLS}')
    a(f'v_mul_f32 v{VMT}, v{S0}, v{VLS}')
    a(f'v_mul_f32 v{VNMC}, v{S0+2}, v{VLS}')
    a('s_waitcnt lgkmcnt(0)')
    for i in range(2 * NWO):
        a(f'v_mul_f32 v{RA+i}, v{RA+i}, v{VMT}')
    for i in range(2 * NWO):
        a(f'v_fmac_f32 v{RA+i}, v{RA+16+i}, v{VNMC}')
    PP = RA + 16
    for i in range(NWO):
        a(f'v_cvt_pk_bf16_f32 v{PP+i}, v{RA+2*i}, v{RA+2*i+1}')
    D1 = 56
    BS = [BB, BB2, S0, S0 + 4]
    def build(n):
        i, rs = n // 2, n % 2
        bb = BS[n % 4]
        tmp = QB + 2 + rs
        a(f'v_perm_b32 v{tmp}, v{PP+i}, v{PP+i}, s{94+rs}')
        for j in range(4):
            a(f'v_and_b32 v{bb+j}, v{tmp}, v{MK+j}')
    build(0)
    for n in range(2 * NWO):
        if n + 1 < 2 * NWO:
            build(n + 1)
        i, rs = n // 2, n % 2
        D = ACC if rs == 0 else D1
        bb = BS[n % 4]
        c = '0' if i == 0 else f'v[{D}:{D+3}]'
        a(f'v_mfma_f32_16x16x32_bf16 v[{D}:{D+3}], v[{WO+4*i}:{WO+4*i+3}], v[{bb}:{bb+3}], {c}')
    for r in range(4):
        a(f'v_cndmask_b32 v{ACC+r}, v{D1+r}, v{ACC+r}, s[92:93]')
    a(f'ds_write_b128 v{VT0}, v[{ACC}:{ACC+3}] offset:{L_P}')
    a('s_waitcnt lgkmcnt(0)')
    a('s_barrier')
    if stamp == 4:
        a('s_memrealtime s[90:91]')
    sstamp()
    a('s_endpgm')

    a.label('L_helper')
    if notail:
        a('s_endpgm')
    if prio:
        a('s_setprio 3')
    if dly:
        a('s_and_b32 s26, s2, 3')
        a('s_cmp_lg_u32 s26, 1')
        a('s_cbranch_scc1 L_nodly')
        for i in range(dly):
            a('s_sleep 127')
        a.label('L_nodly')
    HB = 64
    XB = 136
    SNP = 32
    OLD = 52
    D0, D1 = 20, 56
    VQC, VQP, VEXP = 24, 25, 30
    a(f'v_lshrrev_b32 v{VT2}, 4, v{VL}')
    a(f'v_bfe_u32 v{VAL}, v{VL}, 3, 1')
    a(f'v_and_b32 v{VT3}, 7, v{VL}')
    a(f'v_lshl_add_u32 v{VT0}, v{VT2}, 1, v{VAL}')
    a(f'v_lshlrev_b32 v{VT0}, 13, v{VT0}')
    a(f'v_lshl_add_u32 v{VT0}, v{VT3}, 4, v{VT0}')
    a(f'v_mul_u32_u24 v{VT1}, 1152, v{VAL}')
    a(f'v_lshl_add_u32 v{VT1}, v{VT2}, 2, v{VT1}')
    a(f'v_lshlrev_b32 v{VQP}, 10, v{VAL}')
    a(f'v_lshl_add_u32 v{VQP}, v{VT2}, 7, v{VQP}')
    a(f'v_lshl_add_u32 v{VQP}, v{VT3}, 4, v{VQP}')
    a(f'v_mov_b32 v{VMT}, 0x{OOB:x}')
    a(f'v_cmp_gt_u32 vcc, 32, v{VL}')
    a(f'v_cndmask_b32 v{VQP}, v{VMT}, v{VQP}, vcc')
    a('s_and_b32 s25, s2, 15')
    a('s_and_b32 s26, s2, 3')
    a('s_bfe_u32 s27, s2, 0x20002')
    a('s_mul_i32 s28, s27, 144')
    a('s_lshl_b32 s29, s28, 13')
    a('s_lshl_b32 s31, s21, 9')
    a('s_add_u32 s29, s29, s31')
    a('s_lshl_b32 s31, s26, 7')
    a('s_add_u32 s29, s29, s31')
    a('s_lshl_b32 s28, s28, 1')
    a('s_lshl_b32 s91, s21, 13')
    a('s_lshl_b32 s92, s27, 11')
    a('s_add_u32 s92, s92, s91')
    a('s_lshl_b32 s31, s26, 8')
    a('s_add_u32 s92, s92, s31')
    a('s_lshl_b32 s31, s22, 10')
    a('s_add_u32 s91, s91, s31')
    a('s_add_u32 s93, s91, 4096')
    a('s_waitcnt lgkmcnt(0)')
    srd(a, 52, 10, 576 * 8192)
    srd(a, 40, 18, WS_BYTES)
    srd(a, 48, 4, 2304)
    def qload():
        for t in range(4):
            a(f'buffer_load_dwordx4 v[{SNP+4*t}:{SNP+4*t+3}], v{VOFF}, s[40:43], s{91 if t < 2 else 93} offen offset:{QP_OFF + 2048*(t&1)} sc1')
    qload()
    a(f'buffer_load_dwordx4 v[{OLD}:{OLD+3}], v{VQP}, s[40:43], s92 offen offset:{QP_OFF} sc1')
    for i in range(18):
        a(f'buffer_load_dword v{XB+i}, v{VT1}, s[48:51], s28 offen offset:{16*i}')
    for i in range(18):
        r = HB + i * 4
        a(f'buffer_load_dwordx4 v[{r}:{r+3}], v{VT0}, s[52:55], s29 offen {wnt}')
        a('s_add_u32 s29, s29, 0x10000')
    if b0 == 1:
        a('s_barrier')
    srd(a, 60, 14, 2304)
    srd(a, 64, 16, 256)
    for r in range(4):
        a(f'v_mov_b32 v{QA+r}, -1')
    a(f'v_lshlrev_b32 v{VMT}, 3, v{VL}')
    a('s_lshl_b32 s46, s2, 11')
    a(f's_add_u32 s46, s46, {AP_OFF}')
    a('s_lshl_b32 s47, s25, 13')
    a('s_lshl_b32 s31, s21, 9')
    a('s_add_u32 s47, s47, s31')
    a(f's_add_u32 s47, s47, {OP_OFF}')
    a('s_cmp_lt_u32 s25, 9')
    a(f's_cselect_b32 s47, s47, 0x{OOB:x}')
    VO32 = 3
    a(f'v_mov_b32 v{VO32}, 0x{OOB:x}')
    a(f'v_cmp_gt_u32 vcc, 32, v{VL}')
    a(f'v_cndmask_b32 v{VO32}, v{VO32}, v{VOFF}, vcc')
    a(f'buffer_store_dwordx4 v[{QA}:{QA+3}], v{VOFF}, s[40:43], s46 offen sc1')
    VMLS = 61
    a(f'v_and_b32 v{VMLS}, 31, v{VL}')
    a(f'v_cmp_eq_u32 vcc, 0, v{VMLS}')
    a(f'v_lshrrev_b32 v{VMT}, 5, v{VL}')
    a(f'v_lshlrev_b32 v{VMT}, 3, v{VMT}')
    a(f'v_mov_b32 v{VMLS}, 0x{OOB:x}')
    a(f'v_cndmask_b32 v{VMLS}, v{VMLS}, v{VMT}, vcc')
    a(f'buffer_store_dwordx2 v[{QA}:{QA+1}], v{VMLS}, s[40:43], s46 offen offset:1024 sc1')
    a(f'buffer_store_dwordx4 v[{QA}:{QA+3}], v{VO32}, s[40:43], s47 offen sc1')
    a(f'v_mov_b32 v{QB}, {tot_static*WPP}')
    a(f'v_mov_b32 v{QB+1}, 0x{OOB:x}')
    a('s_cmp_eq_u32 s23, 0' if not noq else 's_cmp_eq_u32 s23, 99')
    a('s_cselect_b64 vcc, -1, 0')
    a(f'v_cndmask_b32 v{QB+1}, v{QB+1}, v{VAO}, vcc')
    a(f'buffer_store_dword v{QB}, v{QB+1}, s[40:43], s44 offen sc1')
    if b0 == 2:
        a('s_barrier')
    a('s_mov_b32 s94, 0x01000100')
    a('s_mov_b32 s95, 0x03020302')
    a('s_waitcnt vmcnt(40)')
    def packbits(dst):
        a(f'v_lshlrev_b32 v{dst}, 31, v{SNP}')
        for i in range(1, 16):
            a(f'v_alignbit_b32 v{dst}, v{SNP+i}, v{dst}, 1')
    packbits(VEXP)
    for r in range(4):
        a(f'v_not_b32 v{OLD+r}, v{OLD+r}')
    if b0 == 3:
        a('s_waitcnt vmcnt(4)')
        a('s_barrier')
    for i in range(18):
        if i == 0:
            a('s_waitcnt vmcnt(22)')
        for rs in (0, 1):
            bb = BB if rs == 0 else BB2
            tmp = QB + 2 + rs
            a(f'v_perm_b32 v{tmp}, v{XB+i}, v{XB+i}, s{94+rs}')
            for j in range(4):
                a(f'v_and_b32 v{bb+j}, v{tmp}, v{MK+j}')
        a(f's_waitcnt vmcnt({4 + 17 - i})')
        if i == 17 and stamp:
            a('s_memrealtime s[96:97]')
        for rs, D in ((0, D0), (1, D1)):
            bb = BB if rs == 0 else BB2
            r = HB + i * 4
            c = '0' if i == 0 else f'v[{D}:{D+3}]'
            a(f'v_mfma_f32_16x16x32_bf16 v[{D}:{D+3}], v[{r}:{r+3}], v[{bb}:{bb+3}], {c}')
    for r in range(4):
        a(f'v_permlane32_swap_b32 v{D1+r}, v{D0+r}')
    for r in range(4):
        a(f'v_mov_b32 v{SNP+r}, v{D1+r}')
    for r in range(4):
        a(f'v_permlane32_swap_b32 v{SNP+r}, v{D1+r}')
    for r in range(4):
        a(f'v_add_f32 v{D0+r}, v{D0+r}, v{D1+r}')
    for r in range(4):
        a(f'v_bfi_b32 v{D0+r}, 1, v{OLD+r}, v{D0+r}')
    a(f'v_lshlrev_b32 v{VQC}, 7, v{VT2}')
    a(f'v_lshl_add_u32 v{VQC}, v{VAL}, 6, v{VQC}')
    a(f'v_lshl_add_u32 v{VQC}, v{VT3}, 1, v{VQC}')
    a(f'v_mov_b32 v{QB}, 1')
    a('s_lshl_b32 s28, s21, 4')
    a('s_mov_b32 s31, 0x400000')
    a('s_waitcnt vmcnt(0)')
    a(f'buffer_store_dwordx4 v[{D0}:{D0+3}], v{VQP}, s[40:43], s92 offen offset:{QP_OFF} sc1')
    if stamp:
        a('s_memrealtime s[72:73]')
    qload()
    a('s_waitcnt vmcnt(4)')
    a(f'buffer_atomic_add v{QB}, v{VAO}, s[64:67], s28 offen sc1')
    a('s_mov_b32 s29, 0')
    a('s_waitcnt vmcnt(1)')
    a('s_branch L_qcheck')
    a.label('L_qpoll')
    a('s_and_b32 s26, s31, 3')
    a('s_cmp_lg_u32 s26, 0')
    a('s_cbranch_scc1 L_qnocnt')
    a(f'buffer_load_dword v{QB+1}, v{VAO}, s[64:67], s28 offen sc1')
    a('s_waitcnt vmcnt(0)')
    a(f'v_readfirstlane_b32 s29, v{QB+1}')
    a.label('L_qnocnt')
    qload()
    a('s_waitcnt vmcnt(0)')
    a('s_cmp_ge_u32 s29, 16')
    a('s_cbranch_scc1 L_qgo')
    a.label('L_qcheck')
    packbits(VT1)
    a(f'v_xor_b32 v{VT1}, v{VT1}, v{VEXP}')
    a(f'v_lshrrev_b32 v{VT1}, 16, v{VT1}')
    a(f'v_cmp_ne_u32 vcc, 0xffff, v{VT1}')
    a('s_sub_u32 s31, s31, 1')
    a('s_cbranch_scc1 L_qgo')
    a('s_cmp_lg_u64 vcc, 0')
    a('s_cbranch_scc1 L_qpoll')
    a.label('L_qgo')
    if stamp:
        a('s_memrealtime s[74:75]')
    for i in range(16):
        a(f'v_and_b32 v{SNP+i}, -2, v{SNP+i}')
    for r in range(4):
        a(f'v_add_f32 v{SNP+r}, v{SNP+r}, v{SNP+4+r}')
        a(f'v_add_f32 v{SNP+8+r}, v{SNP+8+r}, v{SNP+12+r}')
    for r in range(4):
        a(f'v_add_f32 v{SNP+r}, v{SNP+r}, v{SNP+8+r}')
    a(f'v_cvt_pk_bf16_f32 v{SNP}, v{SNP}, v{SNP+1}')
    a(f'v_cvt_pk_bf16_f32 v{SNP+2}, v{SNP+2}, v{SNP+3}')
    a(f'ds_write_b16 v{VQC}, v{SNP} offset:{L_Q}')
    a(f'ds_write_b16_d16_hi v{VQC}, v{SNP} offset:{L_Q+16}')
    a(f'ds_write_b16 v{VQC}, v{SNP+2} offset:{L_Q+32}')
    a(f'ds_write_b16_d16_hi v{VQC}, v{SNP+2} offset:{L_Q+48}')
    a('s_waitcnt lgkmcnt(0)')
    a('s_barrier')
    if tlb:
        srd(a, 32, 6, 1 << 28)
        srd(a, 36, 8, 1 << 28)
        a(f'v_lshlrev_b32 v{VT1}, {tlb}, v{VL}')
        a(f'v_mov_b32 v{VT0}, 0x{OOB:x}')
        a(f'v_cmp_gt_u32 vcc, 0x800000, v{VT1}')
        a(f'v_cndmask_b32 v{VT1}, v{VT0}, v{VT1}, vcc')
        a(f'buffer_load_dword v{QB+2}, v{VT1}, s[32:35], s24 offen nt')
        a(f'buffer_load_dword v{QB+3}, v{VT1}, s[36:39], s24 offen nt')
    a('s_cmp_lg_u32 s21, s25')
    a('s_cbranch_scc1 L_nofin0')
    a('s_cmp_ge_u32 s25, 9')
    a('s_cbranch_scc1 L_nofin0')
    a(f'v_lshlrev_b32 v{VT1}, 4, v{VL}')
    a(f'v_cmp_gt_u32 vcc, 16, v{VL}')
    a(f'v_cndmask_b32 v{VT3}, 16, 0, vcc')
    a.label('L_allpoll')
    a(f'buffer_load_dword v{QB+1}, v{VT1}, s[64:67], 0 offen sc1')
    a('s_waitcnt vmcnt(0)')
    a(f'v_add_u32 v{QB+1}, v{QB+1}, v{VT3}')
    a(f'v_cmp_gt_u32 vcc, 16, v{QB+1}')
    a('s_sub_u32 s31, s31, 1')
    a('s_cbranch_scc1 L_nofin0')
    a('s_sleep 8')
    a('s_cmp_lg_u64 vcc, 0')
    a('s_cbranch_scc1 L_allpoll')
    a.label('L_nofin0')
    a('s_lshl_b32 s27, s21, 15')
    a(f's_add_u32 s27, s27, {AP_OFF}')
    for i in range(8):
        a(f's_add_u32 s{80+i}, s27, {4096*i}')
    a(f'v_lshlrev_b32 v{VNMC}, 3, v{VAL}')
    a(f'v_lshlrev_b32 v{VT0}, 8, v{VAL}')
    a(f'v_lshl_add_u32 v{VT0}, v{VT2}, 6, v{VT0}')
    a(f'v_and_b32 v{VT3}, 7, v{VL}')
    a(f'v_lshl_add_u32 v{VT0}, v{VT3}, 1, v{VT0}')
    a(f'v_mov_b32 v{VDUM}, 0xfffffffe')
    a('s_barrier')
    if stamp:
        a('s_memrealtime s[76:77]')
    RB = 64
    for w in range(NW):
        a(f'ds_read_b128 v[{RB+4*w}:{RB+4*w+3}], v{VOFF} offset:{L_P+1056*w}')
        a(f'ds_read_b64 v[{RB+4*NW+2*w}:{RB+4*NW+2*w+1}], v{VMT} offset:{L_P+1024+1056*w}')
    a('s_waitcnt lgkmcnt(0)')
    combine(a, NW, RB, RB + 4 * NW, RB + 4 * NW + 1, VM, VLS, ACC, 's30', 2)
    for r in (ACC, ACC+1, ACC+2, ACC+3, VM, VLS):
        a(f'v_min_u32 v{r}, v{r}, v{VDUM}')
    a(f'buffer_store_dwordx4 v[{ACC}:{ACC+3}], v{VOFF}, s[40:43], s46 offen sc1')
    a(f'buffer_store_dwordx2 v[{VM}:{VLS}], v{VMLS}, s[40:43], s46 offen offset:1024 sc1')
    if stamp == 4:
        a('s_memrealtime s[48:49]')
        a('s_mov_b64 s[50:51], 0'); a('s_mov_b64 s[52:53], 0'); a('s_mov_b64 s[54:55], 0'); a('s_mov_b64 s[56:57], 0')
        a('s_mov_b32 s58, s31')
        a('s_mov_b32 s59, s31')
    def hstamp(final):
        if not stamp:
            return
        if stamp == 3:
            a('s_memrealtime s[88:89]')
            a('s_waitcnt lgkmcnt(0)')
            a('s_not_b32 s90, s70')
            a(f'v_mov_b32 v{S0}, s88')
            a(f'v_mov_b32 v{S0+1}, s90')
            a(f'v_mov_b32 v{S0+2}, s76')
            a(f'v_mov_b32 v{S0+3}, s74')
            a(f'v_mov_b32 v{S0+4}, s70')
            a(f'buffer_atomic_umax v{S0}, v{VAO}, s[64:67], 0 offen offset:4 sc1')
            a(f'buffer_atomic_umax v{S0+1}, v{VAO}, s[64:67], 0 offen offset:8 sc1')
            a(f'buffer_atomic_umax v{S0+2}, v{VAO}, s[64:67], 0 offen offset:12 sc1')
            a(f'buffer_atomic_umax v{S0+3}, v{VAO}, s[64:67], 0 offen offset:20 sc1')
            a(f'buffer_atomic_umax v{S0+4}, v{VAO}, s[64:67], 0 offen offset:24 sc1')
            return
        a('s_memrealtime s[88:89]')
        a('s_waitcnt lgkmcnt(0)')
        a('s_lshl_b32 s90, s2, 4')
        a('s_add_u32 s90, s90, 14')
        a('s_lshl_b32 s90, s90, 5')
        a('s_add_u32 s90, s90, 0x800000')
        for i, sr in enumerate((70, 72, 74, 76, 78, 88)):
            a(f'v_mov_b32 v{S0+i}, s{sr}')
        a(f'v_mov_b32 v{S0+6}, {final}')
        a(f'v_mov_b32 v{S0+7}, s96')
        a(f'buffer_store_dwordx4 v[{S0}:{S0+3}], v{VAO}, s[40:43], s90 offen')
        a(f'buffer_store_dwordx4 v[{S0+4}:{S0+7}], v{VAO}, s[40:43], s90 offen offset:16')
        if stamp == 4:
            for i, sr in enumerate((48, 78, 50, 52, 54, 56, 58, 59)):
                a(f'v_mov_b32 v{S0+8+i}, s{sr}')
            a(f'buffer_store_dwordx4 v[{S0+8}:{S0+11}], v{VAO}, s[40:43], s90 offen offset:32')
            a(f'buffer_store_dwordx4 v[{S0+12}:{S0+15}], v{VAO}, s[40:43], s90 offen offset:48')
    a('s_cmp_lt_u32 s25, 9')
    a('s_cbranch_scc1 L_hwork')
    if stamp:
        a('s_mov_b64 s[78:79], s[76:77]')
    hstamp(0)
    a('s_endpgm')
    a.label('L_hwork')
    if stamp:
        a('s_mov_b64 s[78:79], s[76:77]')
    a('s_barrier')
    if stamp == 4:
        a('s_memrealtime s[50:51]')
    a('s_barrier')
    if stamp == 4:
        a('s_memrealtime s[52:53]')
    for w in range(NW):
        a(f'ds_read_b128 v[{RB+4*w}:{RB+4*w+3}], v{VOFF} offset:{L_P+1024*w}')
    a('s_waitcnt lgkmcnt(0)')
    for w in range(1, NW):
        for r in range(4):
            a(f'v_add_f32 v{RB+r}, v{RB+r}, v{RB+4*w+r}')
    def addhalves(R, Tm):
        for r in range(4):
            a(f'v_mov_b32 v{Tm+r}, v{R+r}')
        for r in range(4):
            a(f'v_permlane32_swap_b32 v{R+r}, v{Tm+r}')
        for r in range(4):
            a(f'v_add_f32 v{R+r}, v{R+r}, v{Tm+r}')
    addhalves(RB, RB + 4)
    for r in range(4):
        a(f'v_min_u32 v{RB+r}, v{RB+r}, v{VDUM}')
    a(f'buffer_store_dwordx4 v[{RB}:{RB+3}], v{VO32}, s[40:43], s47 offen sc1')
    if stamp == 4:
        a('s_memrealtime s[54:55]')
    a('s_cmp_eq_u32 s21, s25')
    a('s_cbranch_scc1 L_final')
    hstamp(0)
    a('s_endpgm')
    a.label('L_final')
    a(f'v_mul_u32_u24 v{VT1}, 1152, v{VAL}')
    a(f'v_lshl_add_u32 v{VT1}, v{VT2}, 6, v{VT1}')
    a(f'v_lshl_add_u32 v{VT1}, v{VT3}, 1, v{VT1}')
    a(f'v_mov_b32 v{VT0}, 0x{OOB:x}')
    a(f'v_cmp_gt_u32 vcc, 32, v{VL}')
    a(f'v_cndmask_b32 v{VT1}, v{VT0}, v{VT1}, vcc')
    a('s_lshl_b32 s26, s25, 7')
    a('s_lshl_b32 s27, s25, 13')
    a(f's_add_u32 s27, s27, {OP_OFF}')
    a('s_add_u32 s28, s27, 4096')
    NP = oppipe
    RFs = [RB + 8 + 32 * k for k in range(NP)]
    def opissue(k):
        for i in range(8):
            a(f'buffer_load_dwordx4 v[{RFs[k]+4*i}:{RFs[k]+4*i+3}], v{VOFF}, s[40:43], s{27 + i//4} offen offset:{1024*(i&3)} sc1')
    for k in range(NP - 1):
        opissue(k)
        if NP > 1:
            a('s_sleep 4')
    a.label('L_oppoll')
    for k in range(NP):
        opissue((k + NP - 1) % NP)
        a(f's_waitcnt vmcnt({8*(NP-1)})')
        RF = RFs[k]
        regs = list(range(RF, RF + 32))
        a(f'v_max_u32 v{VT0}, v{regs[0]}, v{regs[1]}')
        for i in range(2, 31, 2):
            a(f'v_max3_u32 v{VT0}, v{regs[i]}, v{regs[i+1]}, v{VT0}')
        a(f'v_cmp_eq_u32 vcc, -1, v{VT0}')
        a('s_cmp_eq_u64 vcc, 0')
        a(f's_cbranch_scc1 L_opgo{k}')
        a('s_sub_u32 s31, s31, 1')
        a(f's_cbranch_scc1 L_opgo{k}')
    a('s_branch L_oppoll')
    for k in range(NP):
        RF = RFs[k]
        a.label(f'L_opgo{k}')
        if stamp == 4:
            a('s_memrealtime s[56:57]')
            a('s_sub_u32 s59, s59, s31')
        for step in (4, 2, 1):
            for i in range(step):
                for r in range(4):
                    a(f'v_add_f32 v{RF+4*i+r}, v{RF+4*i+r}, v{RF+4*(i+step)+r}')
        for r in range(4):
            a(f'v_mov_b32 v{RB+r}, v{RF+r}')
        if k < NP - 1:
            a('s_branch L_opfin')
    a.label('L_opfin')
    RF = RB
    addhalves(RF, RF + 4)
    a(f'v_cvt_pk_bf16_f32 v{RF}, v{RF}, v{RF+1}')
    a(f'v_cvt_pk_bf16_f32 v{RF+2}, v{RF+2}, v{RF+3}')
    a(f'buffer_store_short v{RF}, v{VT1}, s[60:63], s26 offen')
    a(f'buffer_store_short_d16_hi v{RF}, v{VT1}, s[60:63], s26 offen offset:16')
    a(f'buffer_store_short v{RF+2}, v{VT1}, s[60:63], s26 offen offset:32')
    a(f'buffer_store_short_d16_hi v{RF+2}, v{VT1}, s[60:63], s26 offen offset:48')
    hstamp(1)
    a.label('L_done')
    a('s_endpgm')
    nv = (a.maxv + 1 + 7) // 8 * 8
    s = HEADER + DOC
    if noq:
        s += f'; cntinit={tot_static*WPP}\n'
    s += f'; @launch grid=(256,1,1) block=({64*(NW+1)},1,1) lds={lds_bytes}\n'
    s += '.amdgcn_target "amdgcn-amd-amdhsa--gfx950"\n.text\n'
    s += a.text()
    s += f""".section .rodata,"a"
.p2align 6
.amdhsa_kernel {kn}
  .amdhsa_next_free_vgpr {nv}
  .amdhsa_next_free_sgpr 100
  .amdhsa_accum_offset {nv}
  .amdhsa_group_segment_fixed_size 0
  .amdhsa_kernarg_size 64
  .amdhsa_user_sgpr_count 2
  .amdhsa_user_sgpr_kernarg_segment_ptr 1
  .amdhsa_system_sgpr_workgroup_id_x 1
.end_amdhsa_kernel
"""
    return s

if __name__ == '__main__':
    ap = argparse.ArgumentParser()
    ap.add_argument('--T', type=int, default=4)
    ap.add_argument('--NBUF', type=int, default=2)
    ap.add_argument('--NW', type=int, default=4)
    ap.add_argument('--nreg', type=int, default=1)
    ap.add_argument('--ch', type=int, default=1)
    ap.add_argument('--cache', default='nt')
    ap.add_argument('--rot', type=int, default=0)
    ap.add_argument('--stamp', type=int, default=0)
    ap.add_argument('--b0', type=int, default=0)
    ap.add_argument('--prio', type=int, default=1)
    ap.add_argument('--pf', type=int, default=0)
    ap.add_argument('--NS', type=int, default=0)
    ap.add_argument('--noq', type=int, default=0)
    ap.add_argument('--static', type=int, default=0)
    ap.add_argument('--slp', type=int, default=0)
    ap.add_argument('--nocomp', type=int, default=0)
    ap.add_argument('--notail', type=int, default=0)
    ap.add_argument('--NL', type=int, default=0)
    ap.add_argument('--wnt', default='nt')
    ap.add_argument('--burst', type=int, default=0)
    ap.add_argument('--fs', type=int, default=0)
    ap.add_argument('--oppipe', type=int, default=1)
    ap.add_argument('--tlb', type=int, default=0)
    ap.add_argument('--dly', type=int, default=0)
    ap.add_argument('-o', default=f'cdna_kernels/{NAME}.s')
    args = ap.parse_args()
    open(args.o, 'w').write(gen(args.T, args.NBUF, args.NW, args.nreg, args.ch, args.cache, args.rot, args.stamp, args.b0, args.prio, args.pf, args.NS, args.noq, args.static, args.slp, args.nocomp, args.notail, args.NL, args.wnt, args.burst, args.fs, args.oppipe, args.tlb, args.dly))
```

```python
import sys, struct, argparse
sys.path.insert(0, 'tools')
from asmlib import Asm

NAME = 'standalone__gqa_block_cached__decode'
CSCALE = (128 ** -0.5) * 1.4426950408889634
def f32bits(x): return struct.unpack('<I', struct.pack('<f', x))[0]

QP_OFF = 0
AP_OFF = 1 << 20
OP_OFF = 2 << 20
CNT_OFF = 3 << 20
WS_BYTES = 1 << 30
OOB = 0x40000000

HEADER = """; Kernarg layout for this problem (64 bytes, ptrs only, base s[0:1]):
;   offset  16: d_in[2] v_cache  shape=(2, 16, 32768, 128) dtype=bfloat16
"""

DOC = '''; ---------------------------------------------------------------------------------------------
;  main loop : tile = 16 keys (4 KiB K + 4 KiB V, coalesced nt loads). QK^T by v_dot2_f32_bf16 + DPP reduction, online softmax
;              (true running max, fp32), PV by v_mfma_f32_16x16x32_bf16 with a one-hot P operand. First 58 tiles per wave
; ---------------------------------------------------------------------------------------------
'''

def srd(a, d, lo, nbytes):
    a(f's_mov_b32 s{d}, s{lo}')
    a(f's_and_b32 s{d+1}, s{lo+1}, 0xffff')
    a(f's_mov_b32 s{d+2}, 0x{nbytes:x}')
    a(f's_mov_b32 s{d+3}, 0x00020000')

def masks(a, vl, vm, vt0, vt1):
    a(f'v_and_b32 v{vt0}, 1, v{vl}')
    a(f'v_lshlrev_b32 v{vt0}, 4, v{vt0}')
    a(f'v_mov_b32 v{vt1}, 0xffff')
    a(f'v_lshlrev_b32 v{vt0}, v{vt0}, v{vt1}')
    a(f'v_bfe_u32 v{vt1}, v{vl}, 1, 2')
    for j in range(4):
        a(f'v_cmp_eq_u32 vcc, {j}, v{vt1}')
        a(f'v_cndmask_b32 v{vm+j}, 0, v{vt0}, vcc')

def combine(a, n, RO, RM, RL, VM, VLS, ACC, sc, mstride=1):
    M = lambda i: RM + i * mstride
    L = lambda i: RL + i * mstride
    a(f'v_max_f32 v{VM}, v{M(0)}, v{M(1)}')
    for i in range(2, n, 2):
        a(f'v_max3_f32 v{VM}, v{M(i)}, v{M(i+1)}, v{VM}')
    for i in range(n):
        a(f'v_sub_f32 v{M(i)}, v{M(i)}, v{VM}')
    for i in range(n):
        a(f'v_mul_f32 v{M(i)}, {sc}, v{M(i)}')
    for i in range(n):
        a(f'v_exp_f32 v{M(i)}, v{M(i)}')
    a(f'v_mul_f32 v{VLS}, v{M(0)}, v{L(0)}')
    for r in range(4):
        a(f'v_mul_f32 v{ACC+r}, v{M(0)}, v{RO+r}')
    for i in range(1, n):
        a(f'v_fmac_f32 v{VLS}, v{M(i)}, v{L(i)}')
        for r in range(4):
            a(f'v_fmac_f32 v{ACC+r}, v{M(i)}, v{RO+4*i+r}')

def anymarker(a, regs, vt, label_retry, scnt, label_giveup):
    a(f'v_max_u32 v{vt}, v{regs[0]}, v{regs[1]}')
    for i in range(2, len(regs) - 1, 2):
        a(f'v_max3_u32 v{vt}, v{regs[i]}, v{regs[i+1]}, v{vt}')
    if len(regs) % 2:
        a(f'v_max_u32 v{vt}, v{regs[-1]}, v{vt}')
    a(f'v_cmp_eq_u32 vcc, -1, v{vt}')
    a(f's_sub_u32 {scnt}, {scnt}, 1')
    a(f's_cbranch_scc1 {label_giveup}')
    a('s_cmp_lg_u64 vcc, 0')
    a(f's_cbranch_scc1 {label_retry}')

def gen(T=4, NBUF=2, NW=4, nreg=1, ch=1, cache='nt', rot=0, stamp=0, b0=0, prio=1, pf=0, NS=0, noq=0, static=0, slp=0, nocomp=0, notail=0, NL=0, wnt='nt', burst=0, fs=0, oppipe=1, tlb=0, dly=0, alast=0, exp=0):
    a = Asm()
    kn = NAME + '_kernel'
    a.raw(f'.globl {kn}\n.p2align 8\n.type {kn},@function\n{kn}:')
    NTP = 32768 // (4 * T)
    tile_bytes = T * 1024
    tsh = tile_bytes.bit_length() - 1
    WPP = 8 * NW
    BUF = 64
    base_static = 2 * NBUF + NS + NL
    first_static = 1 if (NS and fs >= base_static + NBUF) else 0
    n1 = max(0, (fs - base_static - first_static * NBUF) // NBUF)
    tot_static = base_static + (first_static + n1) * NBUF
    def kreg(buf, i): return BUF + buf * 8 * T + 4 * i
    def vreg(buf, i): return BUF + buf * 8 * T + 4 * T + 4 * i
    VL, VOFF = 1, 2
    nvo = (T + 3) // 4
    assert nvo <= 2
    QA, QB, MK, ACC = 8, 12, 16, 20
    VM, VLS, VMT, VT0, VT1, VAL, VNMC = 24, 25, 26, 27, 28, 29, 30
    VAO = 31
    S0, SN = 32, 40
    BB, BB2 = 4, 48
    VA = 52
    VDUM = 60
    VT2, VT3 = 62, 63
    assert T <= 8 and NBUF <= 8
    SOFF = 80
    L_Q = 0
    L_O = 512
    L_P = 2048
    assert NW == 4
    L_G = L_P + NW * 1536
    L_S = (L_G + 4 * 1056 + 1023) // 1024 * 1024
    lds_bytes = L_S + NW * NL * 2 * tile_bytes
    assert lds_bytes <= 160 * 1024
    assert NL == 0 or (T == 4 and NS >= 1)
    a('s_cmp_ge_u32 s2, 256')
    a('s_cbranch_scc1 L_done')
    if stamp:
        a('s_memrealtime s[70:71]')
    a('s_load_dwordx16 s[4:19], s[0:1], 0')
    a(f'v_and_b32 v{VL}, 63, v0')
    a(f'v_lshrrev_b32 v{VT0}, 6, v0')
    a(f'v_lshlrev_b32 v{VOFF}, 4, v{VL}')
    for j in range(1, nvo):
        a(f'v_add_u32 v{VOFF+j}, {4096*j}, v{VOFF}')
    a(f'v_readfirstlane_b32 s20, v{VT0}')
    a(f'v_mov_b32 v{VAO}, 0x{OOB:x}')
    a(f'v_cmp_eq_u32 vcc, 0, v{VL}')
    a(f'v_cndmask_b32 v{VAO}, v{VAO}, 0, vcc')
    a('s_lshr_b32 s21, s2, 4')
    a('s_bfe_u32 s22, s2, 0x10003')
    a('s_and_b32 s23, s2, 7')
    a('s_lshl_b32 s24, s22, 4')
    a('s_add_u32 s24, s24, s21')
    a('s_lshl_b32 s44, s24, 8')
    a(f's_add_u32 s44, s44, {CNT_OFF}')
    a(f's_mul_i32 s45, s24, {rot}')
    a('s_lshl_b32 s24, s24, 23')
    a(f's_mov_b32 s30, 0x{f32bits(CSCALE):x}')
    masks(a, VL, MK, VT0, VT1)
    a('s_cmp_eq_u32 s20, 0')
    a('s_cbranch_scc1 L_helper')

    lr, lc = nreg.bit_length() - 1, ch.bit_length() - 1
    ln = NTP.bit_length() - 1
    def tick2off(st, sd):
        a(f's_add_u32 s29, {st}, s45')
        a(f's_and_b32 s29, s29, {NTP-1}')
        if exp in (2, 4):
            a('s_lshr_b32 s31, s29, 5')
            a(f's_mul_i32 s31, s31, {4 if exp == 2 else 5}')
            a('s_add_u32 s31, s31, s29')
            a('s_and_b32 s31, s31, 31')
            a('s_andn2_b32 s29, s29, 31')
            a('s_or_b32 s29, s29, s31')
        if nreg > 1:
            a(f's_bfe_u32 s31, s29, 0x{(lr << 16) | lc:x}')
            a(f's_lshl_b32 s31, s31, {ln-lr}')
            a(f's_lshr_b32 s28, s29, {lr+lc}')
            a(f's_lshl_b32 s28, s28, {lc}')
            a(f's_or_b32 s31, s31, s28')
            a(f's_and_b32 s29, s29, {ch-1}')
            a(f's_or_b32 s29, s29, s31')
        a(f's_lshl_b32 s29, s29, {tsh}')
        a('s_add_u32 s29, s29, s24')
        a(f's_cmp_lt_u32 {st}, {NTP}')
        a(f's_cselect_b32 {sd}, s29, 0x10000000')
    if exp == 3:
        a('s_sub_u32 s25, s20, 1')
        a('s_lshl_b32 s25, s25, 3')
        a('s_add_u32 s25, s25, s23')
    else:
        a(f's_mul_i32 s25, s23, {NW}')
        a('s_add_u32 s25, s25, s20')
        a('s_sub_u32 s25, s25, 1')
    assert NBUF + NS + NL <= 12
    for b in range(NBUF + NS + NL):
        a(f's_add_u32 s26, s25, {b*WPP}')
        tick2off('s26', f's{SOFF+b}')
    for b in range(NBUF):
        a(f's_add_u32 s26, s25, {(NBUF+NS+NL+b)*WPP}')
        a(f'v_mov_b32 v{VA+b}, s26')
    if NL:
        a('s_sub_u32 s27, s20, 1')
        a(f's_mul_i32 s47, s27, {NL*2*tile_bytes}')
        a(f's_add_u32 s47, s47, {L_S}')
        a(f'v_add_u32 v{VT2}, s47, v{VOFF}')
    a(f'v_and_b32 v{VT0}, 15, v{VL}')
    a(f'v_lshlrev_b32 v{VT0}, 4, v{VT0}')
    a(f'v_bfe_u32 v{VT1}, v{VL}, 3, 1')
    a(f'v_lshl_add_u32 v{VT0}, v{VT1}, 8, v{VT0}')
    a(f'v_xor_b32 v{VT1}, 0x100, v{VT0}')
    a(f'v_mov_b32 v{VM}, 0xff800000')
    a(f'v_mov_b32 v{VLS}, 0')
    for r in range(4):
        a(f'v_mov_b32 v{ACC+r}, 0')
    a(f'v_mov_b32 v{VDUM+1}, 0x{OOB:x}')
    a('s_waitcnt lgkmcnt(0)')
    srd(a, 32, 6, 1 << 28)
    srd(a, 36, 8, 1 << 28)
    srd(a, 40, 18, WS_BYTES)
    srd(a, 56, 12, 4096 * 1152)
    if b0:
        a('s_barrier')
    Q = []
    def issueK(buf):
        for i in range(T):
            a(f'buffer_load_dwordx4 v[{kreg(buf,i)}:{kreg(buf,i)+3}], v{VOFF+i//4}, s[32:35], s{SOFF+buf} offen offset:{(i%4)*1024} {cache}')
            Q.append(('K', buf))
    def issueV(buf):
        for i in range(T):
            a(f'buffer_load_dwordx4 v[{vreg(buf,i)}:{vreg(buf,i)+3}], v{VOFF+i//4}, s[36:39], s{SOFF+buf} offen offset:{(i%4)*1024} {cache}')
            Q.append(('V', buf))
    def waitfor(tag):
        idx = max(i for i, t in enumerate(Q) if t == tag)
        n = len(Q) - 1 - idx
        a(f's_waitcnt vmcnt({min(n, 63)})')
        del Q[:idx + 1]
        return n
    for b in range(NBUF + NS):
        if pf and b >= pf:
            waitfor(('V', b - pf))
        if b < NBUF:
            a(f'buffer_load_dword v{VDUM}, v{VDUM+1}, s[40:43], 0 offen')
            Q.append(('A', b))
        issueK(b); issueV(b)
        assert len(Q) <= 63
    for k in range(NL):
        b = NBUF + NS + k
        if pf and b >= pf:
            waitfor(('V', b - pf))
        for tag, sr, off in (('K', 32, 0), ('V', 36, tile_bytes)):
            a(f's_add_u32 m0, s47, {k*2*tile_bytes + off}')
            a('s_nop 0')
            for i in range(T):
                a(f'buffer_load_dwordx4 v{VOFF}, s[{sr}:{sr+3}], s{SOFF+b} offen offset:{i*1024} {cache} lds')
                Q.append((tag, b))
        assert len(Q) <= 63
    if not noq:
        a('s_barrier')
    a(f'ds_read_b128 v[{QA}:{QA+3}], v{VT0} offset:{L_Q}')
    a(f'ds_read_b128 v[{QB}:{QB+3}], v{VT1} offset:{L_Q}')
    if stamp:
        a('s_memrealtime s[72:73]')
    a('s_waitcnt lgkmcnt(0)')
    w1 = T + (NBUF - 1) * (2 * T + 1)
    w2 = (NBUF - 1) * (2 * T + 1) + T + 1
    if burst:
        w2 = (NBUF - 1) * (2 * T + 1)
    if alast:
        assert burst and NBUF == 1 and NS >= 1
        w1, w2 = T + 1, 1
    assert w2 <= 63
    a_real = a
    def tile(buf, mode):
        refill = mode != 'stash'
        a0 = a_real
        def a(t):
            op = t.split()[0]
            if nocomp & 1 and op.startswith('v_dot2'): return
            if nocomp & 2 and op.startswith('v_') and not op.startswith('v_dot2') and not op.startswith('v_mfma') and 'readfirstlane' not in op and f'v{VA+buf},' not in t: return
            if nocomp & 4 and op.startswith('v_mfma'): return
            a0(t)
        st = static or mode == 'sloop' or (mode == 'first' and first_static)
        if mode == 'sloop':
            a(f's_waitcnt vmcnt({w1})')
        elif mode == 'loop':
            a(f's_cmp_ge_u32 s{SOFF+buf}, 0x10000000')
            a('s_cbranch_scc1 L_exit')
            a(f's_waitcnt vmcnt({w1})')
        elif ('K', buf) in Q:
            waitfor(('K', buf))
        if refill and not (alast and mode == 'loop'):
            a(f'v_readfirstlane_b32 s26, v{VA+buf}')
        for i in range(T):
            k = kreg(buf, i)
            for j in range(4):
                c = '0' if j == 0 else f'v{S0+i}'
                a(f'v_dot2_f32_bf16 v{S0+i}, v{k+j}, v{QA+j}, {c}')
                c = '0' if j == 0 else f'v{SN+i}'
                a(f'v_dot2_f32_bf16 v{SN+i}, v{k+j}, v{QB+j}, {c}')
        vpend = ('V', buf) in Q
        if vpend:
            for i, t in enumerate(Q):
                if t == ('V', buf): Q[i] = ('Vold', buf)
        def refillK():
            if st:
                a(f'v_add_u32 v{VA+buf}, {NBUF*WPP}, v{VA+buf}')
                tick2off('s26', f's{SOFF+buf}')
                if exp == 1:
                    a(f'v_mov_b32 v{VDUM}, 0')
                    a(f'buffer_atomic_add v{VDUM}, v{VAO}, s[40:43], s44 offen sc0 sc1')
                else:
                    a(f'buffer_load_dword v{VDUM}, v{VDUM+1}, s[40:43], 0 offen')
            else:
                a(f'v_mov_b32 v{VA+buf}, 1')
                tick2off('s26', f's{SOFF+buf}')
                if burst and NBUF == 1 and mode == 'loop':
                    a('s_cbranch_scc0 L_exit')
                a(f'buffer_atomic_add v{VA+buf}, v{VAO}, s[40:43], s44 offen sc0 sc1')
            Q.append(('A', buf))
            issueK(buf)
        if refill and not burst:
            refillK()
        for i in range(T):
            a(f'v_add_f32_dpp v{S0+i}, v{SN+i}, v{S0+i} row_ror:8 row_mask:0xf bank_mask:0xf')
        for i in range(T):
            a(f'v_add_f32_dpp v{S0+i}, v{S0+i}, v{S0+i} row_half_mirror row_mask:0xf bank_mask:0xf')
        for i in range(T):
            a(f'v_add_f32_dpp v{S0+i}, v{S0+i}, v{S0+i} quad_perm:[1,0,3,2] row_mask:0xf bank_mask:0xf')
        for i in range(T):
            a(f'v_add_f32_dpp v{S0+i}, v{S0+i}, v{S0+i} quad_perm:[2,3,0,1] row_mask:0xf bank_mask:0xf')
        a(f'v_max3_f32 v{VMT}, v{S0}, v{S0+1}, v{VM}')
        for i in range(2, T, 2):
            a(f'v_max3_f32 v{VMT}, v{S0+i}, v{S0+i+1}, v{VMT}')
        a(f'v_mov_b32 v{VT0}, v{VMT}')
        a(f'v_permlane16_swap_b32 v{VMT}, v{VT0}')
        a(f'v_max_f32 v{VMT}, v{VMT}, v{VT0}')
        a(f'v_mov_b32 v{VT0}, v{VMT}')
        a(f'v_permlane32_swap_b32 v{VMT}, v{VT0}')
        a(f'v_max_f32 v{VMT}, v{VMT}, v{VT0}')
        a(f'v_sub_f32 v{VT0}, v{VM}, v{VMT}')
        a(f'v_mul_f32 v{VT0}, s30, v{VT0}')
        a(f'v_exp_f32 v{VAL}, v{VT0}')
        a(f'v_mul_f32 v{VNMC}, s30, v{VMT}')
        a(f'v_mov_b32 v{VM}, v{VMT}')
        for i in range(T):
            a(f'v_fma_f32 v{S0+i}, v{S0+i}, s30, -v{VNMC}')
        for i in range(T):
            a(f'v_exp_f32 v{S0+i}, v{S0+i}')
        for r in range(4):
            a(f'v_mul_f32 v{ACC+r}, v{ACC+r}, v{VAL}')
        a(f'v_mul_f32 v{VLS}, v{VLS}, v{VAL}')
        for i in range(T):
            a(f'v_add_f32 v{VLS}, v{VLS}, v{S0+i}')
            a(f'v_cvt_pk_bf16_f32 v{SN+i}, v{S0+i}, v{S0+i}')
        if mode in ('loop', 'sloop'):
            a(f's_waitcnt vmcnt({w2})')
        elif vpend:
            waitfor(('Vold', buf))
        for i in range(T):
            bb = BB if i % 2 == 0 else BB2
            for j in range(4):
                a(f'v_and_b32 v{bb+j}, v{SN+i}, v{MK+j}')
            v = vreg(buf, i)
            a(f'v_mfma_f32_16x16x32_bf16 v[{ACC}:{ACC+3}], v[{v}:{v+3}], v[{bb}:{bb+3}], v[{ACC}:{ACC+3}]')
        if stamp == 2:
            a('s_memrealtime s[98:99]')
            a(f's_lshr_b32 s47, s{SOFF+buf}, {tsh-2}')
            a('s_add_u32 s47, s47, 0x1000000')
            a('s_waitcnt lgkmcnt(0)')
            a(f'v_mov_b32 v{VDUM-1}, s98')
            a(f'buffer_store_dword v{VDUM-1}, v{VAO}, s[40:43], s47 offen')
            Q.append(('S', buf))
        if refill and alast:
            if mode == 'loop':
                a('s_waitcnt vmcnt(0)')
                a(f'v_readfirstlane_b32 s26, v{VA+buf}')
            tick2off('s26', f's{SOFF+buf}')
            if mode == 'loop':
                a('s_cbranch_scc0 L_exit')
            if st:
                a(f'v_add_u32 v{VA+buf}, {NBUF*WPP}, v{VA+buf}')
            else:
                a(f'v_mov_b32 v{VA+buf}, 1')
            issueK(buf)
            issueV(buf)
            if st:
                a(f'buffer_load_dword v{VDUM}, v{VDUM+1}, s[40:43], 0 offen')
            else:
                a(f'buffer_atomic_add v{VA+buf}, v{VAO}, s[40:43], s44 offen sc0 sc1')
            Q.append(('A', buf))
        elif refill:
            if burst:
                refillK()
            issueV(buf)
    if NS:
        for b in range(NBUF):
            tile(b, 'first')
        for b in range(NBUF, NBUF + NS):
            tile(b, 'stash')
        def readback(k):
            b = NBUF + NS + k
            dst = NBUF + (k % NS)
            if ('V', b) in Q:
                waitfor(('V', b))
            for i in range(T):
                a(f'ds_read_b128 v[{kreg(dst,i)}:{kreg(dst,i)+3}], v{VT2} offset:{k*2*tile_bytes + i*1024}')
            for i in range(T):
                a(f'ds_read_b128 v[{vreg(dst,i)}:{vreg(dst,i)+3}], v{VT2} offset:{k*2*tile_bytes + tile_bytes + i*1024}')
        nrb = min(NS, 2)
        for k in range(min(nrb - 1, NL)):
            readback(k)
        for k in range(NL):
            if nrb > 1 and k + 1 < NL:
                readback(k + 1)
                a(f's_waitcnt lgkmcnt({2*T})')
            else:
                if nrb == 1:
                    readback(k)
                a('s_waitcnt lgkmcnt(0)')
            tile(NBUF + (k % NS), 'stash')
        exp = []
        for b in range(NBUF):
            exp += [('A', b)] + [('K', b)] * T + [('V', b)] * T
        if alast:
            exp = [('K', 0)] * T + [('V', 0)] * T + [('A', 0)]
        assert stamp == 2 or Q == exp, Q
    RPW = 256 // NW
    NWO = RPW // 8
    WO = BUF + NBUF * 8 * T
    a(f'v_lshrrev_b32 v{VT2}, 4, v{VL}')
    a(f'v_bfe_u32 v{VT3}, v{VL}, 3, 1')
    a(f'v_lshl_add_u32 v{VT0}, v{VT2}, 1, v{VT3}')
    a(f'v_mul_u32_u24 v{VT0}, 1152, v{VT0}')
    a(f'v_and_b32 v{VT1}, 7, v{VL}')
    a(f'v_lshl_add_u32 v{VT0}, v{VT1}, 4, v{VT0}')
    a('s_sub_u32 s27, s20, 1')
    a('s_and_b32 s25, s2, 15')
    a(f's_mul_i32 s28, s21, {NW}')
    a('s_add_u32 s28, s28, s27')
    a(f's_mul_i32 s28, s28, {RPW*1152}')
    a('s_lshl_b32 s29, s25, 7')
    a('s_add_u32 s28, s28, s29')
    a('s_cmp_lt_u32 s25, 9')
    a('s_cselect_b32 s28, s28, 0x10000000')
    for i in range(NWO):
        a(f'buffer_load_dwordx4 v[{WO+4*i}:{WO+4*i+3}], v{VT0}, s[56:59], s28 offen {wnt}')
        a('s_add_u32 s28, s28, 9216')
    if n1:
        a(f's_mov_b32 s46, {n1}')
        a.label('L_sloop')
        for b in range(NBUF):
            tile(b, 'sloop')
        a('s_sub_u32 s46, s46, 1')
        a('s_cmp_lg_u32 s46, 0')
        a('s_cbranch_scc1 L_sloop')
    a.label('L_loop')
    for b in range(NBUF):
        tile(b, 'loop')
    a('s_branch L_loop')
    a.label('L_exit')
    if notail:
        a('s_waitcnt vmcnt(0)')
        a('s_memrealtime s[74:75]')
        a('s_waitcnt lgkmcnt(0)')
        a('s_sub_u32 s27, s20, 1')
        a('s_lshl_b32 s76, s2, 4')
        a('s_add_u32 s76, s76, s27')
        a('s_lshl_b32 s76, s76, 5')
        a('s_add_u32 s76, s76, 0x800000')
        a('s_getreg_b32 s77, hwreg(HW_REG_XCC_ID)')
        a(f'v_mov_b32 v{S0}, s70')
        a(f'v_mov_b32 v{S0+1}, s72')
        a(f'v_mov_b32 v{S0+2}, s74')
        a(f'v_mov_b32 v{S0+3}, s77')
        a(f'buffer_store_dwordx4 v[{S0}:{S0+3}], v{VAO}, s[40:43], s76 offen')
        a('s_lshl_b32 s76, s2, 4')
        a('s_add_u32 s76, s76, 14')
        a('s_lshl_b32 s76, s76, 5')
        a('s_add_u32 s76, s76, 0x800000')
        a(f'buffer_store_dwordx4 v[{S0}:{S0+3}], v{VAO}, s[40:43], s76 offen')
        a(f'v_mov_b32 v{S0+1}, s74')
        a(f'buffer_store_dwordx4 v[{S0}:{S0+3}], v{VAO}, s[40:43], s76 offen offset:16')
        a('s_endpgm')
    if noq:
        a('s_barrier')
    if stamp:
        a('s_memrealtime s[74:75]')
    a(f'v_mov_b32 v{VT0}, v{VLS}')
    a(f'v_permlane16_swap_b32 v{VLS}, v{VT0}')
    a(f'v_add_f32 v{VLS}, v{VLS}, v{VT0}')
    a(f'v_mov_b32 v{VT0}, v{VLS}')
    a(f'v_permlane32_swap_b32 v{VLS}, v{VT0}')
    a(f'v_add_f32 v{VLS}, v{VLS}, v{VT0}')
    PS = 1056
    a(f'v_and_b32 v{VT1}, 7, v{VL}')
    a(f'v_lshlrev_b32 v{VT1}, 2, v{VT1}')
    a(f'v_lshl_add_u32 v{VT1}, v{VT2}, 7, v{VT1}')
    a(f'v_lshl_add_u32 v{VT1}, v{VT3}, 9, v{VT1}')
    a(f's_mul_i32 s29, s27, {PS}')
    a(f'v_add_u32 v{VT1}, s29, v{VT1}')
    a(f'v_lshlrev_b32 v{VT0}, 3, v{VT3}')
    a(f'v_add_u32 v{VT0}, s29, v{VT0}')
    for r in range(4):
        a(f'ds_write_b32 v{VT1}, v{ACC+r} offset:{L_P+32*r}')
    a(f'ds_write_b64 v{VT0}, v[{VM}:{VLS}] offset:{L_P+1024}')
    def sstamp():
        if stamp:
            a('s_waitcnt lgkmcnt(0)')
            a('s_lshl_b32 s76, s2, 4')
            a('s_add_u32 s76, s76, s27')
            a('s_lshl_b32 s76, s76, 5')
            a('s_add_u32 s76, s76, 0x800000')
            a('s_getreg_b32 s77, hwreg(HW_REG_XCC_ID)')
            a(f'v_mov_b32 v{S0}, s70')
            a(f'v_mov_b32 v{S0+1}, s72')
            a(f'v_mov_b32 v{S0+2}, s74')
            a(f'v_mov_b32 v{S0+3}, s77')
            a(f'buffer_store_dwordx4 v[{S0}:{S0+3}], v{VAO}, s[40:43], s76 offen')
            if stamp == 4:
                a(f'v_mov_b32 v{S0+4}, s78')
                a(f'v_mov_b32 v{S0+5}, s88')
                a(f'v_mov_b32 v{S0+6}, s90')
                a(f'v_mov_b32 v{S0+7}, 0')
                a(f'buffer_store_dwordx4 v[{S0+4}:{S0+7}], v{VAO}, s[40:43], s76 offen offset:16')
    a('s_waitcnt lgkmcnt(0)')
    a('s_barrier')
    a('s_cmp_lt_u32 s25, 9')
    a('s_cbranch_scc1 L_work')
    if stamp == 4:
        a('s_mov_b32 s78, 0'); a('s_mov_b32 s88, 0'); a('s_mov_b32 s90, 0')
    sstamp()
    a('s_endpgm')
    a.label('L_work')
    a('s_lshl_b32 s28, s21, 15')
    a('s_lshl_b32 s29, s27, 13')
    a('s_add_u32 s28, s28, s29')
    a(f's_add_u32 s80, s28, {AP_OFF}')
    a('s_add_u32 s81, s80, 4096')
    a(f'v_lshrrev_b32 v{VAL}, 5, v{VL}')
    a(f'v_lshlrev_b32 v{VAL}, 3, v{VAL}')
    a('s_mov_b32 s31, 0x400000')
    a('s_mov_b32 s28, 0xf')
    a('s_mov_b32 s94, 0x01000100')
    a('s_mov_b32 s95, 0x03020302')
    a(f'v_cmp_gt_u32 s[92:93], 32, v{VL}')
    GB = BUF
    GM = BUF + 16
    a('s_waitcnt vmcnt(0)')
    a.label('L_appoll')
    for i in range(4):
        a(f's_bitcmp1_b32 s28, {i}')
        a(f's_cbranch_scc0 L_apskip{i}')
        a(f'buffer_load_dwordx4 v[{GB+4*i}:{GB+4*i+3}], v{VOFF}, s[40:43], s{80+i//2} offen offset:{2048*(i&1)} sc1')
        a(f'buffer_load_dwordx2 v[{GM+2*i}:{GM+2*i+1}], v{VAL}, s[40:43], s{80+i//2} offen offset:{2048*(i&1)+1024} sc1')
        a.label(f'L_apskip{i}')
    a('s_waitcnt vmcnt(0)')
    for i in range(4):
        a(f'v_max3_u32 v{S0+i}, v{GB+4*i}, v{GB+4*i+1}, v{GB+4*i+2}')
    for i in range(4):
        a(f'v_max3_u32 v{S0+i}, v{GB+4*i+3}, v{GM+2*i}, v{S0+i}')
    for i in range(4):
        a(f'v_max_u32 v{S0+i}, v{GM+2*i+1}, v{S0+i}')
    a(f'v_max3_u32 v{VT0}, v{S0}, v{S0+1}, v{S0+2}')
    a(f'v_max_u32 v{VT0}, v{S0+3}, v{VT0}')
    a(f'v_cmp_eq_u32 vcc, -1, v{VT0}')
    a('s_cmp_eq_u64 vcc, 0')
    a('s_cbranch_scc1 L_apgo')
    a('s_mov_b32 s28, 0')
    for i in range(4):
        a(f'v_cmp_eq_u32 vcc, -1, v{S0+i}')
        a('s_cmp_lg_u64 vcc, 0')
        a(f's_cselect_b32 s29, {1 << i}, 0')
        a('s_or_b32 s28, s28, s29')
    a('s_sub_u32 s31, s31, 1')
    a('s_cbranch_scc1 L_apgo')
    if slp:
        a(f's_sleep {slp}')
    a('s_branch L_appoll')
    a.label('L_apgo')
    if stamp == 4:
        a('s_memrealtime s[78:79]')
    combine(a, 4, GB, GM, GM + 1, VM, VLS, ACC, 's30', 2)
    a(f's_mul_i32 s29, s27, {PS}')
    a(f'v_add_u32 v{VT0}, s29, v{VOFF}')
    a(f'v_add_u32 v{VT1}, s29, v{VAL}')
    a(f'ds_write_b128 v{VT0}, v[{ACC}:{ACC+3}] offset:{L_G}')
    a(f'ds_write_b64 v{VT1}, v[{VM}:{VLS}] offset:{L_G+1024}')
    a(f'v_mul_u32_u24 v{VT3}, {2*PS}, v{VT3}')
    a(f'v_lshl_add_u32 v{VT2}, v{VT2}, 3, v{VT3}')
    a('s_lshl_b32 s29, s27, 8')
    a(f'v_add_u32 v{VT2}, s29, v{VT2}')
    a('s_lshr_b32 s29, s27, 1')
    a('s_lshl_b32 s29, s29, 3')
    a(f'v_add_u32 v{VT3}, s29, v{VT3}')
    a('s_lshl_b32 s29, s27, 10')
    a(f'v_add_u32 v{VT0}, s29, v{VOFF}')
    a('s_waitcnt lgkmcnt(0)')
    a('s_barrier')
    if stamp == 4:
        a('s_memrealtime s[88:89]')
    RA = BUF
    a(f'ds_read_b64 v[{S0}:{S0+1}], v{VT3} offset:{L_G+1024}')
    a(f'ds_read_b64 v[{S0+2}:{S0+3}], v{VT3} offset:{L_G+1024+PS}')
    for i in range(NWO):
        if i == 6:
            a('s_waitcnt lgkmcnt(8)')
        a(f'ds_read_b64 v[{RA+2*i}:{RA+2*i+1}], v{VT2} offset:{L_G+32*i}')
        a(f'ds_read_b64 v[{RA+16+2*i}:{RA+16+2*i+1}], v{VT2} offset:{L_G+32*i+PS}')
    a(f'v_max_f32 v{VM}, v{S0}, v{S0+2}')
    a(f'v_sub_f32 v{S0}, v{S0}, v{VM}')
    a(f'v_sub_f32 v{S0+2}, v{S0+2}, v{VM}')
    a(f'v_mul_f32 v{S0}, s30, v{S0}')
    a(f'v_mul_f32 v{S0+2}, s30, v{S0+2}')
    a(f'v_exp_f32 v{S0}, v{S0}')
    a(f'v_exp_f32 v{S0+2}, v{S0+2}')
    a(f'v_mul_f32 v{VLS}, v{S0}, v{S0+1}')
    a(f'v_fmac_f32 v{VLS}, v{S0+2}, v{S0+3}')
    a(f'v_rcp_f32 v{VLS}, v{VLS}')
    a(f'v_mul_f32 v{VMT}, v{S0}, v{VLS}')
    a(f'v_mul_f32 v{VNMC}, v{S0+2}, v{VLS}')
    a('s_waitcnt lgkmcnt(0)')
    for i in range(2 * NWO):
        a(f'v_mul_f32 v{RA+i}, v{RA+i}, v{VMT}')
    for i in range(2 * NWO):
        a(f'v_fmac_f32 v{RA+i}, v{RA+16+i}, v{VNMC}')
    PP = RA + 16
    for i in range(NWO):
        a(f'v_cvt_pk_bf16_f32 v{PP+i}, v{RA+2*i}, v{RA+2*i+1}')
    D1 = 56
    BS = [BB, BB2, S0, S0 + 4]
    def build(n):
        i, rs = n // 2, n % 2
        bb = BS[n % 4]
        tmp = QB + 2 + rs
        a(f'v_perm_b32 v{tmp}, v{PP+i}, v{PP+i}, s{94+rs}')
        for j in range(4):
            a(f'v_and_b32 v{bb+j}, v{tmp}, v{MK+j}')
    build(0)
    for n in range(2 * NWO):
        if n + 1 < 2 * NWO:
            build(n + 1)
        i, rs = n // 2, n % 2
        D = ACC if rs == 0 else D1
        bb = BS[n % 4]
        c = '0' if i == 0 else f'v[{D}:{D+3}]'
        a(f'v_mfma_f32_16x16x32_bf16 v[{D}:{D+3}], v[{WO+4*i}:{WO+4*i+3}], v[{bb}:{bb+3}], {c}')
    for r in range(4):
        a(f'v_cndmask_b32 v{ACC+r}, v{D1+r}, v{ACC+r}, s[92:93]')
    a(f'ds_write_b128 v{VT0}, v[{ACC}:{ACC+3}] offset:{L_P}')
    a('s_waitcnt lgkmcnt(0)')
    a('s_barrier')
    if stamp == 4:
        a('s_memrealtime s[90:91]')
    sstamp()
    a('s_endpgm')

    a.label('L_helper')
    if notail:
        a('s_endpgm')
    if prio:
        a('s_setprio 3')
    if dly:
        a('s_and_b32 s26, s2, 3')
        a('s_cmp_lg_u32 s26, 1')
        a('s_cbranch_scc1 L_nodly')
        for i in range(dly):
            a('s_sleep 127')
        a.label('L_nodly')
    HB = 64
    XB = 136
    SNP = 32
    OLD = 52
    D0, D1 = 20, 56
    VQC, VQP, VEXP = 24, 25, 30
    a(f'v_lshrrev_b32 v{VT2}, 4, v{VL}')
    a(f'v_bfe_u32 v{VAL}, v{VL}, 3, 1')
    a(f'v_and_b32 v{VT3}, 7, v{VL}')
    a(f'v_lshl_add_u32 v{VT0}, v{VT2}, 1, v{VAL}')
    a(f'v_lshlrev_b32 v{VT0}, 13, v{VT0}')
    a(f'v_lshl_add_u32 v{VT0}, v{VT3}, 4, v{VT0}')
    a(f'v_mul_u32_u24 v{VT1}, 1152, v{VAL}')
    a(f'v_lshl_add_u32 v{VT1}, v{VT2}, 2, v{VT1}')
    a(f'v_lshlrev_b32 v{VQP}, 10, v{VAL}')
    a(f'v_lshl_add_u32 v{VQP}, v{VT2}, 7, v{VQP}')
    a(f'v_lshl_add_u32 v{VQP}, v{VT3}, 4, v{VQP}')
    a(f'v_mov_b32 v{VMT}, 0x{OOB:x}')
    a(f'v_cmp_gt_u32 vcc, 32, v{VL}')
    a(f'v_cndmask_b32 v{VQP}, v{VMT}, v{VQP}, vcc')
    a('s_and_b32 s25, s2, 15')
    a('s_and_b32 s26, s2, 3')
    a('s_bfe_u32 s27, s2, 0x20002')
    a('s_mul_i32 s28, s27, 144')
    a('s_lshl_b32 s29, s28, 13')
    a('s_lshl_b32 s31, s21, 9')
    a('s_add_u32 s29, s29, s31')
    a('s_lshl_b32 s31, s26, 7')
    a('s_add_u32 s29, s29, s31')
    a('s_lshl_b32 s28, s28, 1')
    a('s_lshl_b32 s91, s21, 13')
    a('s_lshl_b32 s92, s27, 11')
    a('s_add_u32 s92, s92, s91')
    a('s_lshl_b32 s31, s26, 8')
    a('s_add_u32 s92, s92, s31')
    a('s_lshl_b32 s31, s22, 10')
    a('s_add_u32 s91, s91, s31')
    a('s_add_u32 s93, s91, 4096')
    a('s_waitcnt lgkmcnt(0)')
    srd(a, 52, 10, 576 * 8192)
    srd(a, 40, 18, WS_BYTES)
    srd(a, 48, 4, 2304)
    def qload():
        for t in range(4):
            a(f'buffer_load_dwordx4 v[{SNP+4*t}:{SNP+4*t+3}], v{VOFF}, s[40:43], s{91 if t < 2 else 93} offen offset:{QP_OFF + 2048*(t&1)} sc1')
    qload()
    a(f'buffer_load_dwordx4 v[{OLD}:{OLD+3}], v{VQP}, s[40:43], s92 offen offset:{QP_OFF} sc1')
    for i in range(18):
        a(f'buffer_load_dword v{XB+i}, v{VT1}, s[48:51], s28 offen offset:{16*i}')
    for i in range(18):
        r = HB + i * 4
        a(f'buffer_load_dwordx4 v[{r}:{r+3}], v{VT0}, s[52:55], s29 offen {wnt}')
        a('s_add_u32 s29, s29, 0x10000')
    if b0 == 1:
        a('s_barrier')
    srd(a, 60, 14, 2304)
    srd(a, 64, 16, 256)
    for r in range(4):
        a(f'v_mov_b32 v{QA+r}, -1')
    a(f'v_lshlrev_b32 v{VMT}, 3, v{VL}')
    a('s_lshl_b32 s46, s2, 11')
    a(f's_add_u32 s46, s46, {AP_OFF}')
    a('s_lshl_b32 s47, s25, 13')
    a('s_lshl_b32 s31, s21, 9')
    a('s_add_u32 s47, s47, s31')
    a(f's_add_u32 s47, s47, {OP_OFF}')
    a('s_cmp_lt_u32 s25, 9')
    a(f's_cselect_b32 s47, s47, 0x{OOB:x}')
    VO32 = 3
    a(f'v_mov_b32 v{VO32}, 0x{OOB:x}')
    a(f'v_cmp_gt_u32 vcc, 32, v{VL}')
    a(f'v_cndmask_b32 v{VO32}, v{VO32}, v{VOFF}, vcc')
    a(f'buffer_store_dwordx4 v[{QA}:{QA+3}], v{VOFF}, s[40:43], s46 offen sc1')
    VMLS = 61
    a(f'v_and_b32 v{VMLS}, 31, v{VL}')
    a(f'v_cmp_eq_u32 vcc, 0, v{VMLS}')
    a(f'v_lshrrev_b32 v{VMT}, 5, v{VL}')
    a(f'v_lshlrev_b32 v{VMT}, 3, v{VMT}')
    a(f'v_mov_b32 v{VMLS}, 0x{OOB:x}')
    a(f'v_cndmask_b32 v{VMLS}, v{VMLS}, v{VMT}, vcc')
    a(f'buffer_store_dwordx2 v[{QA}:{QA+1}], v{VMLS}, s[40:43], s46 offen offset:1024 sc1')
    a(f'buffer_store_dwordx4 v[{QA}:{QA+3}], v{VO32}, s[40:43], s47 offen sc1')
    a(f'v_mov_b32 v{QB}, {tot_static*WPP}')
    a(f'v_mov_b32 v{QB+1}, 0x{OOB:x}')
    a('s_cmp_eq_u32 s23, 0' if not noq else 's_cmp_eq_u32 s23, 99')
    a('s_cselect_b64 vcc, -1, 0')
    a(f'v_cndmask_b32 v{QB+1}, v{QB+1}, v{VAO}, vcc')
    a(f'buffer_store_dword v{QB}, v{QB+1}, s[40:43], s44 offen sc1')
    if b0 == 2:
        a('s_barrier')
    a('s_mov_b32 s94, 0x01000100')
    a('s_mov_b32 s95, 0x03020302')
    a('s_waitcnt vmcnt(40)')
    def packbits(dst):
        a(f'v_lshlrev_b32 v{dst}, 31, v{SNP}')
        for i in range(1, 16):
            a(f'v_alignbit_b32 v{dst}, v{SNP+i}, v{dst}, 1')
    packbits(VEXP)
    for r in range(4):
        a(f'v_not_b32 v{OLD+r}, v{OLD+r}')
    if b0 == 3:
        a('s_waitcnt vmcnt(4)')
        a('s_barrier')
    for i in range(18):
        if i == 0:
            a('s_waitcnt vmcnt(22)')
        for rs in (0, 1):
            bb = BB if rs == 0 else BB2
            tmp = QB + 2 + rs
            a(f'v_perm_b32 v{tmp}, v{XB+i}, v{XB+i}, s{94+rs}')
            for j in range(4):
                a(f'v_and_b32 v{bb+j}, v{tmp}, v{MK+j}')
        a(f's_waitcnt vmcnt({4 + 17 - i})')
        if i == 17 and stamp:
            a('s_memrealtime s[96:97]')
        for rs, D in ((0, D0), (1, D1)):
            bb = BB if rs == 0 else BB2
            r = HB + i * 4
            c = '0' if i == 0 else f'v[{D}:{D+3}]'
            a(f'v_mfma_f32_16x16x32_bf16 v[{D}:{D+3}], v[{r}:{r+3}], v[{bb}:{bb+3}], {c}')
    for r in range(4):
        a(f'v_permlane32_swap_b32 v{D1+r}, v{D0+r}')
    for r in range(4):
        a(f'v_mov_b32 v{SNP+r}, v{D1+r}')
    for r in range(4):
        a(f'v_permlane32_swap_b32 v{SNP+r}, v{D1+r}')
    for r in range(4):
        a(f'v_add_f32 v{D0+r}, v{D0+r}, v{D1+r}')
    for r in range(4):
        a(f'v_bfi_b32 v{D0+r}, 1, v{OLD+r}, v{D0+r}')
    a(f'v_lshlrev_b32 v{VQC}, 7, v{VT2}')
    a(f'v_lshl_add_u32 v{VQC}, v{VAL}, 6, v{VQC}')
    a(f'v_lshl_add_u32 v{VQC}, v{VT3}, 1, v{VQC}')
    a(f'v_mov_b32 v{QB}, 1')
    a('s_lshl_b32 s28, s21, 4')
    a('s_mov_b32 s31, 0x400000')
    a('s_waitcnt vmcnt(0)')
    a(f'buffer_store_dwordx4 v[{D0}:{D0+3}], v{VQP}, s[40:43], s92 offen offset:{QP_OFF} sc1')
    if stamp:
        a('s_memrealtime s[72:73]')
    qload()
    a('s_waitcnt vmcnt(4)')
    a(f'buffer_atomic_add v{QB}, v{VAO}, s[64:67], s28 offen sc1')
    a('s_mov_b32 s29, 0')
    a('s_waitcnt vmcnt(1)')
    a('s_branch L_qcheck')
    a.label('L_qpoll')
    a('s_and_b32 s26, s31, 3')
    a('s_cmp_lg_u32 s26, 0')
    a('s_cbranch_scc1 L_qnocnt')
    a(f'buffer_load_dword v{QB+1}, v{VAO}, s[64:67], s28 offen sc1')
    a('s_waitcnt vmcnt(0)')
    a(f'v_readfirstlane_b32 s29, v{QB+1}')
    a.label('L_qnocnt')
    qload()
    a('s_waitcnt vmcnt(0)')
    a('s_cmp_ge_u32 s29, 16')
    a('s_cbranch_scc1 L_qgo')
    a.label('L_qcheck')
    packbits(VT1)
    a(f'v_xor_b32 v{VT1}, v{VT1}, v{VEXP}')
    a(f'v_lshrrev_b32 v{VT1}, 16, v{VT1}')
    a(f'v_cmp_ne_u32 vcc, 0xffff, v{VT1}')
    a('s_sub_u32 s31, s31, 1')
    a('s_cbranch_scc1 L_qgo')
    a('s_cmp_lg_u64 vcc, 0')
    a('s_cbranch_scc1 L_qpoll')
    a.label('L_qgo')
    if stamp:
        a('s_memrealtime s[74:75]')
    for i in range(16):
        a(f'v_and_b32 v{SNP+i}, -2, v{SNP+i}')
    for r in range(4):
        a(f'v_add_f32 v{SNP+r}, v{SNP+r}, v{SNP+4+r}')
        a(f'v_add_f32 v{SNP+8+r}, v{SNP+8+r}, v{SNP+12+r}')
    for r in range(4):
        a(f'v_add_f32 v{SNP+r}, v{SNP+r}, v{SNP+8+r}')
    a(f'v_cvt_pk_bf16_f32 v{SNP}, v{SNP}, v{SNP+1}')
    a(f'v_cvt_pk_bf16_f32 v{SNP+2}, v{SNP+2}, v{SNP+3}')
    a(f'ds_write_b16 v{VQC}, v{SNP} offset:{L_Q}')
    a(f'ds_write_b16_d16_hi v{VQC}, v{SNP} offset:{L_Q+16}')
    a(f'ds_write_b16 v{VQC}, v{SNP+2} offset:{L_Q+32}')
    a(f'ds_write_b16_d16_hi v{VQC}, v{SNP+2} offset:{L_Q+48}')
    a('s_waitcnt lgkmcnt(0)')
    a('s_barrier')
    if tlb:
        srd(a, 32, 6, 1 << 28)
        srd(a, 36, 8, 1 << 28)
        a(f'v_lshlrev_b32 v{VT1}, {tlb}, v{VL}')
        a(f'v_mov_b32 v{VT0}, 0x{OOB:x}')
        a(f'v_cmp_gt_u32 vcc, 0x800000, v{VT1}')
        a(f'v_cndmask_b32 v{VT1}, v{VT0}, v{VT1}, vcc')
        a(f'buffer_load_dword v{QB+2}, v{VT1}, s[32:35], s24 offen nt')
        a(f'buffer_load_dword v{QB+3}, v{VT1}, s[36:39], s24 offen nt')
    a('s_cmp_lg_u32 s21, s25')
    a('s_cbranch_scc1 L_nofin0')
    a('s_cmp_ge_u32 s25, 9')
    a('s_cbranch_scc1 L_nofin0')
    a(f'v_lshlrev_b32 v{VT1}, 4, v{VL}')
    a(f'v_cmp_gt_u32 vcc, 16, v{VL}')
    a(f'v_cndmask_b32 v{VT3}, 16, 0, vcc')
    a.label('L_allpoll')
    a(f'buffer_load_dword v{QB+1}, v{VT1}, s[64:67], 0 offen sc1')
    a('s_waitcnt vmcnt(0)')
    a(f'v_add_u32 v{QB+1}, v{QB+1}, v{VT3}')
    a(f'v_cmp_gt_u32 vcc, 16, v{QB+1}')
    a('s_sub_u32 s31, s31, 1')
    a('s_cbranch_scc1 L_nofin0')
    a('s_sleep 8')
    a('s_cmp_lg_u64 vcc, 0')
    a('s_cbranch_scc1 L_allpoll')
    a.label('L_nofin0')
    a('s_lshl_b32 s27, s21, 15')
    a(f's_add_u32 s27, s27, {AP_OFF}')
    for i in range(8):
        a(f's_add_u32 s{80+i}, s27, {4096*i}')
    a(f'v_lshlrev_b32 v{VNMC}, 3, v{VAL}')
    a(f'v_lshlrev_b32 v{VT0}, 8, v{VAL}')
    a(f'v_lshl_add_u32 v{VT0}, v{VT2}, 6, v{VT0}')
    a(f'v_and_b32 v{VT3}, 7, v{VL}')
    a(f'v_lshl_add_u32 v{VT0}, v{VT3}, 1, v{VT0}')
    a(f'v_mov_b32 v{VDUM}, 0xfffffffe')
    a('s_barrier')
    if stamp:
        a('s_memrealtime s[76:77]')
    RB = 64
    for w in range(NW):
        a(f'ds_read_b128 v[{RB+4*w}:{RB+4*w+3}], v{VOFF} offset:{L_P+1056*w}')
        a(f'ds_read_b64 v[{RB+4*NW+2*w}:{RB+4*NW+2*w+1}], v{VMT} offset:{L_P+1024+1056*w}')
    a('s_waitcnt lgkmcnt(0)')
    combine(a, NW, RB, RB + 4 * NW, RB + 4 * NW + 1, VM, VLS, ACC, 's30', 2)
    for r in (ACC, ACC+1, ACC+2, ACC+3, VM, VLS):
        a(f'v_min_u32 v{r}, v{r}, v{VDUM}')
    a(f'buffer_store_dwordx4 v[{ACC}:{ACC+3}], v{VOFF}, s[40:43], s46 offen sc1')
    a(f'buffer_store_dwordx2 v[{VM}:{VLS}], v{VMLS}, s[40:43], s46 offen offset:1024 sc1')
    if stamp == 4:
        a('s_memrealtime s[48:49]')
        a('s_mov_b64 s[50:51], 0'); a('s_mov_b64 s[52:53], 0'); a('s_mov_b64 s[54:55], 0'); a('s_mov_b64 s[56:57], 0')
        a('s_mov_b32 s58, s31')
        a('s_mov_b32 s59, s31')
    def hstamp(final):
        if not stamp:
            return
        if stamp == 3:
            a('s_memrealtime s[88:89]')
            a('s_waitcnt lgkmcnt(0)')
            a('s_not_b32 s90, s70')
            a(f'v_mov_b32 v{S0}, s88')
            a(f'v_mov_b32 v{S0+1}, s90')
            a(f'v_mov_b32 v{S0+2}, s76')
            a(f'v_mov_b32 v{S0+3}, s74')
            a(f'v_mov_b32 v{S0+4}, s70')
            a(f'buffer_atomic_umax v{S0}, v{VAO}, s[64:67], 0 offen offset:4 sc1')
            a(f'buffer_atomic_umax v{S0+1}, v{VAO}, s[64:67], 0 offen offset:8 sc1')
            a(f'buffer_atomic_umax v{S0+2}, v{VAO}, s[64:67], 0 offen offset:12 sc1')
            a(f'buffer_atomic_umax v{S0+3}, v{VAO}, s[64:67], 0 offen offset:20 sc1')
            a(f'buffer_atomic_umax v{S0+4}, v{VAO}, s[64:67], 0 offen offset:24 sc1')
            return
        a('s_memrealtime s[88:89]')
        a('s_waitcnt lgkmcnt(0)')
        a('s_lshl_b32 s90, s2, 4')
        a('s_add_u32 s90, s90, 14')
        a('s_lshl_b32 s90, s90, 5')
        a('s_add_u32 s90, s90, 0x800000')
        for i, sr in enumerate((70, 72, 74, 76, 78, 88)):
            a(f'v_mov_b32 v{S0+i}, s{sr}')
        a(f'v_mov_b32 v{S0+6}, {final}')
        a(f'v_mov_b32 v{S0+7}, s96')
        a(f'buffer_store_dwordx4 v[{S0}:{S0+3}], v{VAO}, s[40:43], s90 offen')
        a(f'buffer_store_dwordx4 v[{S0+4}:{S0+7}], v{VAO}, s[40:43], s90 offen offset:16')
        if stamp == 4:
            for i, sr in enumerate((48, 78, 50, 52, 54, 56, 58, 59)):
                a(f'v_mov_b32 v{S0+8+i}, s{sr}')
            a(f'buffer_store_dwordx4 v[{S0+8}:{S0+11}], v{VAO}, s[40:43], s90 offen offset:32')
            a(f'buffer_store_dwordx4 v[{S0+12}:{S0+15}], v{VAO}, s[40:43], s90 offen offset:48')
    a('s_cmp_lt_u32 s25, 9')
    a('s_cbranch_scc1 L_hwork')
    if stamp:
        a('s_mov_b64 s[78:79], s[76:77]')
    hstamp(0)
    a('s_endpgm')
    a.label('L_hwork')
    if stamp:
        a('s_mov_b64 s[78:79], s[76:77]')
    a('s_barrier')
    if stamp == 4:
        a('s_memrealtime s[50:51]')
    a('s_barrier')
    if stamp == 4:
        a('s_memrealtime s[52:53]')
    for w in range(NW):
        a(f'ds_read_b128 v[{RB+4*w}:{RB+4*w+3}], v{VOFF} offset:{L_P+1024*w}')
    a('s_waitcnt lgkmcnt(0)')
    for w in range(1, NW):
        for r in range(4):
            a(f'v_add_f32 v{RB+r}, v{RB+r}, v{RB+4*w+r}')
    def addhalves(R, Tm):
        for r in range(4):
            a(f'v_mov_b32 v{Tm+r}, v{R+r}')
        for r in range(4):
            a(f'v_permlane32_swap_b32 v{R+r}, v{Tm+r}')
        for r in range(4):
            a(f'v_add_f32 v{R+r}, v{R+r}, v{Tm+r}')
    addhalves(RB, RB + 4)
    for r in range(4):
        a(f'v_min_u32 v{RB+r}, v{RB+r}, v{VDUM}')
    a(f'buffer_store_dwordx4 v[{RB}:{RB+3}], v{VO32}, s[40:43], s47 offen sc1')
    if stamp == 4:
        a('s_memrealtime s[54:55]')
    a('s_cmp_eq_u32 s21, s25')
    a('s_cbranch_scc1 L_final')
    hstamp(0)
    a('s_endpgm')
    a.label('L_final')
    a(f'v_mul_u32_u24 v{VT1}, 1152, v{VAL}')
    a(f'v_lshl_add_u32 v{VT1}, v{VT2}, 6, v{VT1}')
    a(f'v_lshl_add_u32 v{VT1}, v{VT3}, 1, v{VT1}')
    a(f'v_mov_b32 v{VT0}, 0x{OOB:x}')
    a(f'v_cmp_gt_u32 vcc, 32, v{VL}')
    a(f'v_cndmask_b32 v{VT1}, v{VT0}, v{VT1}, vcc')
    a('s_lshl_b32 s26, s25, 7')
    a('s_lshl_b32 s27, s25, 13')
    a(f's_add_u32 s27, s27, {OP_OFF}')
    a('s_add_u32 s28, s27, 4096')
    NP = oppipe
    RFs = [RB + 8 + 32 * k for k in range(NP)]
    def opissue(k):
        for i in range(8):
            a(f'buffer_load_dwordx4 v[{RFs[k]+4*i}:{RFs[k]+4*i+3}], v{VOFF}, s[40:43], s{27 + i//4} offen offset:{1024*(i&3)} sc1')
    for k in range(NP - 1):
        opissue(k)
        if NP > 1:
            a('s_sleep 4')
    a.label('L_oppoll')
    for k in range(NP):
        opissue((k + NP - 1) % NP)
        a(f's_waitcnt vmcnt({8*(NP-1)})')
        RF = RFs[k]
        regs = list(range(RF, RF + 32))
        a(f'v_max_u32 v{VT0}, v{regs[0]}, v{regs[1]}')
        for i in range(2, 31, 2):
            a(f'v_max3_u32 v{VT0}, v{regs[i]}, v{regs[i+1]}, v{VT0}')
        a(f'v_cmp_eq_u32 vcc, -1, v{VT0}')
        a('s_cmp_eq_u64 vcc, 0')
        a(f's_cbranch_scc1 L_opgo{k}')
        a('s_sub_u32 s31, s31, 1')
        a(f's_cbranch_scc1 L_opgo{k}')
    a('s_branch L_oppoll')
    for k in range(NP):
        RF = RFs[k]
        a.label(f'L_opgo{k}')
        if stamp == 4:
            a('s_memrealtime s[56:57]')
            a('s_sub_u32 s59, s59, s31')
        for step in (4, 2, 1):
            for i in range(step):
                for r in range(4):
                    a(f'v_add_f32 v{RF+4*i+r}, v{RF+4*i+r}, v{RF+4*(i+step)+r}')
        for r in range(4):
            a(f'v_mov_b32 v{RB+r}, v{RF+r}')
        if k < NP - 1:
            a('s_branch L_opfin')
    a.label('L_opfin')
    RF = RB
    addhalves(RF, RF + 4)
    a(f'v_cvt_pk_bf16_f32 v{RF}, v{RF}, v{RF+1}')
    a(f'v_cvt_pk_bf16_f32 v{RF+2}, v{RF+2}, v{RF+3}')
    a(f'buffer_store_short v{RF}, v{VT1}, s[60:63], s26 offen')
    a(f'buffer_store_short_d16_hi v{RF}, v{VT1}, s[60:63], s26 offen offset:16')
    a(f'buffer_store_short v{RF+2}, v{VT1}, s[60:63], s26 offen offset:32')
    a(f'buffer_store_short_d16_hi v{RF+2}, v{VT1}, s[60:63], s26 offen offset:48')
    hstamp(1)
    a.label('L_done')
    a('s_endpgm')
    nv = (a.maxv + 1 + 7) // 8 * 8
    s = HEADER + DOC
    if noq:
        s += f'; cntinit={tot_static*WPP}\n'
    s += f'; @launch grid=(256,1,1) block=({64*(NW+1)},1,1) lds={lds_bytes}\n'
    s += '.amdgcn_target "amdgcn-amd-amdhsa--gfx950"\n.text\n'
    s += a.text()
    s += f""".section .rodata,"a"
.p2align 6
.amdhsa_kernel {kn}
  .amdhsa_next_free_vgpr {nv}
  .amdhsa_next_free_sgpr 100
  .amdhsa_accum_offset {nv}
  .amdhsa_group_segment_fixed_size 0
  .amdhsa_kernarg_size 64
  .amdhsa_user_sgpr_count 2
  .amdhsa_user_sgpr_kernarg_segment_ptr 1
  .amdhsa_system_sgpr_workgroup_id_x 1
.end_amdhsa_kernel
"""
    return s

if __name__ == '__main__':
    ap = argparse.ArgumentParser()
    ap.add_argument('--T', type=int, default=4)
    ap.add_argument('--NBUF', type=int, default=2)
    ap.add_argument('--NW', type=int, default=4)
    ap.add_argument('--nreg', type=int, default=1)
    ap.add_argument('--ch', type=int, default=1)
    ap.add_argument('--cache', default='nt')
    ap.add_argument('--rot', type=int, default=0)
    ap.add_argument('--stamp', type=int, default=0)
    ap.add_argument('--b0', type=int, default=0)
    ap.add_argument('--prio', type=int, default=1)
    ap.add_argument('--pf', type=int, default=0)
    ap.add_argument('--NS', type=int, default=0)
    ap.add_argument('--noq', type=int, default=0)
    ap.add_argument('--static', type=int, default=0)
    ap.add_argument('--slp', type=int, default=0)
    ap.add_argument('--nocomp', type=int, default=0)
    ap.add_argument('--notail', type=int, default=0)
    ap.add_argument('--NL', type=int, default=0)
    ap.add_argument('--wnt', default='nt')
    ap.add_argument('--burst', type=int, default=0)
    ap.add_argument('--fs', type=int, default=0)
    ap.add_argument('--oppipe', type=int, default=1)
    ap.add_argument('--tlb', type=int, default=0)
    ap.add_argument('--dly', type=int, default=0)
    ap.add_argument('--alast', type=int, default=0)
    ap.add_argument('--exp', type=int, default=0)
    ap.add_argument('-o', default=f'cdna_kernels/{NAME}.s')
    args = ap.parse_args()
    open(args.o, 'w').write(gen(args.T, args.NBUF, args.NW, args.nreg, args.ch, args.cache, args.rot, args.stamp, args.b0, args.prio, args.pf, args.NS, args.noq, args.static, args.slp, args.nocomp, args.notail, args.NL, args.wnt, args.burst, args.fs, args.oppipe, args.tlb, args.dly, args.alast, args.exp))
```
